```python
import torch

def _softmax(x, axis=-1):
    return torch.softmax(x, dim=axis)
def _gelu(x):
    return torch.nn.functional.gelu(x, approximate="tanh")
def _silu(x):
    return torch.nn.functional.silu(x)
def _sigmoid(x):
    return torch.sigmoid(x)
def _layernorm(x, axis=-1, eps=1e-5):
    m = x.mean(dim=axis, keepdim=True)
    v = x.var(dim=axis, keepdim=True, unbiased=False)
    return (x - m) / torch.sqrt(v + eps)
def _scatter_add(tgt, idx, src, axis=0):
    return tgt.clone().index_add_(axis, idx, src)
def _segment_sum(src, seg, n):
    out = torch.zeros((n,) + src.shape[1:], dtype=src.dtype)
    return out.index_add_(0, seg, src)
def _pad(x, pw):
    flat = tuple(v for pair in reversed(pw) for v in pair)
    return torch.nn.functional.pad(x, flat)

kernel_name = 'standalone__cross_network_dcn_v2__recsys'

def setup_inputs():

    _w = (lambda a: (lambda t: t.to(torch.bfloat16) if t.is_floating_point() else t)(torch.as_tensor(a)))
    B, F, D, L = 16384, 26, 16, 3
    Din = min(F * D, 512)
    R = max(Din // 4, 2)
    sc = Din ** -0.5
    return {
        "x0": _w((lambda *s: torch.randn(*s, dtype=torch.bfloat16) * 0.05)(B, Din)),
        "U":  _w((lambda *s: torch.randn(*s, dtype=torch.bfloat16) * 1.6)(L, Din, R) * sc),
        "V":  _w((lambda *s: torch.randn(*s, dtype=torch.bfloat16) * 1.6)(L, R, Din) * sc),
        "bs": _w((lambda *s: torch.randn(*s, dtype=torch.bfloat16) * 0.05)(L, Din)),
    }

def reference(x0, U, V, bs):
    x = x0
    for l in range(U.shape[0]):
        h = torch.einsum('rd,bd->br', V[l], x)
        h = torch.einsum('dr,br->bd', U[l], h)
        x = x0 * (h + bs[l]) + x
    return x
```

```python
NAME = "standalone__cross_network_dcn_v2__recsys"
L = []
A = L.append
A("; @launch grid=(512,1,1) block=(64,1,1) lds=0")
A('.amdgcn_target "amdgcn-amd-amdhsa--gfx950"')
A(f".text\n.globl {NAME}_kernel\n.p2align 8\n.type {NAME}_kernel,@function\n{NAME}_kernel:")
A("s_cmp_ge_u32 s2, 512\ns_cbranch_scc1 L_done")
A("s_load_dwordx4 s[4:7], s[0:1], 0\ns_load_dwordx4 s[8:11], s[0:1], 16\ns_load_dwordx2 s[12:13], s[0:1], 32")
A("s_waitcnt lgkmcnt(0)")
def srd(d, b, n):
    A(f"s_mov_b32 s{d}, s{b}\ns_mov_b32 s{d+1}, s{b+1}\ns_mov_b32 s{d+2}, {n}\ns_mov_b32 s{d+3}, 0x20000")
srd(16, 4, 16384*832)
srd(20, 6, 3*86528)
srd(24, 8, 3*86528)
srd(28, 10, 3*832)
srd(32, 12, 16384*832)
X0 = 0; X = 104; ACC = 208; AOP = 224; T = 232
A("v_and_b32 v240, 31, v0\nv_lshrrev_b32 v241, 5, v0")
A("s_lshl_b32 s36, s2, 5\nv_add_u32 v242, s36, v240\ns_mov_b32 s37, 832\nv_mul_lo_u32 v242, v242, s37\nv_lshl_add_u32 v242, v241, 4, v242")
A("v_and_b32 v246, 0x13, v240\nv_and_b32 v247, 4, v240\nv_lshl_or_b32 v246, v247, 1, v246\nv_and_b32 v247, 8, v240\nv_lshrrev_b32 v247, 1, v247\nv_or_b32 v246, v246, v247")
A("v_mul_lo_u32 v243, v246, s37\nv_lshl_add_u32 v243, v241, 4, v243")
A("s_mov_b32 s37, 208\nv_mul_lo_u32 v244, v246, s37\nv_lshl_add_u32 v244, v241, 4, v244")
A("v_lshlrev_b32 v245, 1, v246")
A("v_mul_lo_u32 v248, v246, s37")
for s in range(26):
    A(f"buffer_load_dwordx4 v[{X0+4*s}:{X0+4*s+3}], v242, s[16:19], 0 offen offset:{32*s}")
A("s_waitcnt vmcnt(0)")
for i in range(104):
    A(f"v_mov_b32 v{X+i}, v{X0+i}")
H = 208
for l in range(3):
    for mt in range(4):
        for s in range(26):
            A(f"s_mov_b32 s38, {l*86528 + mt*32*832}")
            A(f"buffer_load_dwordx4 v[{AOP}:{AOP+3}], v243, s[24:27], s38 offen offset:{32*s}")
            A("s_waitcnt vmcnt(0)")
            c = "0" if s == 0 else f"v[{ACC}:{ACC+15}]"
            A(f"v_mfma_f32_32x32x16_bf16 v[{ACC}:{ACC+15}], v[{AOP}:{AOP+3}], v[{X+4*s}:{X+4*s+3}], {c}")
        A("s_nop 15")
        for j in range(8):
            if mt == 3 and j >= 4: break
            A(f"v_cvt_pk_bf16_f32 v{T}, v{ACC+2*j}, v{ACC+2*j+1}")
            if mt == 3:
                A(f"v_mov_b32 v{T+1}, {'0x3f80' if j == 0 else '0'}")
                A("v_cmp_eq_u32 vcc, 1, v241\ns_nop 1")
                A(f"v_cndmask_b32 v{T}, v{T}, v{T+1}, vcc")
            A(f"v_accvgpr_write_b32 a{H+8*mt+j}, v{T}")
    for t in range(13):
        for s in range(7):
            A(f"s_mov_b32 s38, {l*86528 + t*32*208}")
            if s < 6:
                A(f"buffer_load_dwordx4 v[{AOP}:{AOP+3}], v244, s[20:23], s38 offen offset:{32*s}")
                A("s_waitcnt vmcnt(0)")
            else:
                A(f"buffer_load_dwordx4 v[{AOP}:{AOP+3}], v248, s[20:23], s38 offen offset:{32*s}")
                A(f"buffer_load_ushort v{T}, v245, s[28:31], 0 offen offset:{l*832 + t*64}")
                A("s_waitcnt vmcnt(0)")
                A("v_cmp_eq_u32 vcc, 1, v241\ns_nop 1")
                A(f"v_cndmask_b32 v{AOP}, v{AOP}, v{T}, vcc")
                A("s_nop 1")
            c = "1.0" if (s == 0 and l == 0) else f"a[{16*t}:{16*t+15}]"
            A(f"v_mfma_f32_32x32x16_bf16 a[{16*t}:{16*t+15}], v[{AOP}:{AOP+3}], a[{H+4*s}:{H+4*s+3}], {c}")
        A("s_nop 15")
        for j in range(8):
            A(f"v_accvgpr_read_b32 v{T}, a{16*t+2*j}\nv_accvgpr_read_b32 v{T+1}, a{16*t+2*j+1}")
            A(f"v_lshlrev_b32 v{T+2}, 16, v{X0+8*t+j}\nv_and_b32 v{T+3}, 0xffff0000, v{X0+8*t+j}")
            A(f"v_mul_f32 v{T}, v{T}, v{T+2}\nv_mul_f32 v{T+1}, v{T+1}, v{T+3}")
            A(f"v_cvt_pk_bf16_f32 v{X+8*t+j}, v{T}, v{T+1}")
        A("s_nop 1")
for s in range(26):
    A(f"buffer_store_dwordx4 v[{X+4*s}:{X+4*s+3}], v242, s[32:35], 0 offen offset:{32*s}")
A("s_waitcnt vmcnt(0)")
A("L_done:\ns_endpgm")
A(f'.section .rodata,"a"\n.p2align 6\n.amdhsa_kernel {NAME}_kernel\n  .amdhsa_next_free_vgpr 512\n  .amdhsa_next_free_sgpr 102\n  .amdhsa_accum_offset 256\n  .amdhsa_group_segment_fixed_size 0\n  .amdhsa_kernarg_size 56\n  .amdhsa_user_sgpr_count 2\n  .amdhsa_user_sgpr_kernarg_segment_ptr 1\n  .amdhsa_system_sgpr_workgroup_id_x 1\n.end_amdhsa_kernel')
open("simple.s", "w").write("\n".join(L) + "\n")
```

```python
INF = 10**9

def vr(a, n=1): return [f"v{a+i}" for i in range(n)]
def ar(a, n=1): return [f"a{a+i}" for i in range(n)]
def rng(p, a, n): return f"{p}[{a}:{a+n-1}]" if n > 1 else f"{p}{a}"

class Op:
    def __init__(self, text, kind, rd=(), wr=(), cost=None, nb=None, lrd=(), lwr=(), srcc=(), needs=(), sub=None, name=""):
        self.text = text; self.kind = kind
        self.rd = list(rd); self.wr = list(wr); self.lrd = list(lrd); self.lwr = list(lwr)
        self.srcc = list(srcc); self.needs = list(needs); self.sub = sub; self.name = name
        dc = dict(mfma32=2, mfma16=2, valu=1, salu=1, dsr=1, dsw=5, dsw64=3, dma=2, vld=2, st=4, bar=1, raw=1)
        db = dict(mfma32=8, mfma16=8, valu=4, salu=4, dsr=8, dsw=8, dsw64=8, dma=8, vld=8, st=8, bar=4, raw=4)
        if kind == 'grp':
            self.cost = sum(o.cost for o in sub); self.nb = sum(o.nb for o in sub)
        else:
            self.cost = dc[kind] if cost is None else cost
            self.nb = db[kind] if nb is None else nb
        self.est = -INF; self.dl = INF; self.deps = []; self.prio = 50
        self.gap = None; self.seq = None; self.pos = None
        self.wv = None; self.ev = {}
    def is_ds(self):
        if self.kind == 'grp': return any(o.is_ds() for o in self.sub)
        return self.kind in ('dsr', 'dsw', 'dsw64')
    def is_dsw(self): return self.kind in ('dsw', 'dsw64')

class Emitter:
    def __init__(self, lg_slack=2):
        self.out = []
        self.lg = []; self.vm = []
        self.lg_done = 0; self.vm_done = 0
        self.pend = {}
        self.lds_w = {}
        self.lds_r = {}
        self.npos = 0
        self.haz = {}
        self.gap = -1
        self.lg_slack = lg_slack
        self.nwait = 0; self.nnop = 0
        self.cur = {}
    def need(self, op):
        lg = 0; vm = 0
        ops = op.sub if op.kind == 'grp' else [op]
        for o in ops:
            for r in o.rd + o.wr:
                p = self.pend.get(r)
                if p:
                    if p[0] == 'lg':
                        if o.kind == 'dsr' and r in o.wr and r not in o.rd: continue
                        lg = max(lg, p[1] + 1)
                    else:
                        if o.kind == 'vld' and r in o.wr and r not in o.rd: continue
                        if getattr(o, 'nowaw', False) and r in o.wr: continue
                        vm = max(vm, p[1] + 1)
            for t in o.lrd:
                if t in self.lds_w: vm = max(vm, self.lds_w[t] + 1)
            if o.kind == 'dma':
                for t in o.lwr:
                    if t in self.lds_r: lg = max(lg, self.lds_r[t] + 1)
            for n in o.needs:
                assert n.seq is not None, f"barrier needs unissued op {n.text}"
                if n.kind in ('dsr', 'dsw', 'dsw64'): lg = max(lg, n.seq + 1)
                else: vm = max(vm, n.seq + 1)
        return (lg if lg > self.lg_done else 0, vm if vm > self.vm_done else 0)
    def raw(self, text, cost=1, nb=4, ws=1):
        self.out.append((text, self.gap, cost, nb)); self.npos += ws
    def wait(self, lg, vm):
        parts = []
        if vm:
            n = min(63, len(self.vm) - vm); self.vm_done = len(self.vm) - n
            parts.append(f"vmcnt({n})")
        if lg:
            k = lg
            while k < len(self.lg) and self.lg[k].gap is not None and self.lg[k].gap <= self.gap - self.lg_slack: k += 1
            n = min(15, len(self.lg) - k); self.lg_done = len(self.lg) - n
            parts.append(f"lgkmcnt({n})")
        self.raw("s_waitcnt " + " ".join(parts)); self.nwait += 1
    def hazard(self, o):
        need = 0
        k = o.kind
        ismf = k in ('mfma32', 'mfma16')
        for r in set(o.rd + o.wr):
            for (t, pos, extra) in self.haz.get(r, []):
                d = self.npos - pos - 1
                req = 0
                if t == 'valu_w' and ismf and r in o.rd: req = 2
                if t in ('mf32_w', 'mf16_w'):
                    n = 12 if t == 'mf32_w' else 8
                    if ismf:
                        if r in o.srcc and extra == tuple(o.srcc) and t == ('mf32_w' if k == 'mfma32' else 'mf16_w'): req = 0
                        elif r in o.rd: req = n
                        else: req = n
                    else: req = n
                if t in ('mf32_c', 'mf16_c') and k == 'valu' and r in o.wr: req = 7 if t == 'mf32_c' else 3
                if t == 'st_r' and r in o.wr: req = 2
                if t == 'm0_w' and k == 'dma': req = 1
                if t == 'valu_w' and getattr(o, 'rfl', False): req = 1
                if t == 'valu_sw' and k in ('dma', 'vld', 'st'): req = 5
                if t == 'valu_sw' and k == 'valu': req = 2
                need = max(need, req - d)
        return need
    def emit(self, op):
        lg, vm = self.need(op)
        if lg or vm: self.wait(lg, vm)
        ops = op.sub if op.kind == 'grp' else [op]
        op.gap = self.gap
        for o in ops:
            h = self.hazard(o)
            while h > 0:
                n = min(h, 16); self.raw(f"s_nop {n-1}", cost=n, ws=n); h -= n; self.nnop += n
            o.gap = self.gap; o.pos = self.npos
            for r, e in o.ev.items():
                assert self.cur.get(r) == e, f"value check failed at gap {self.gap}: {o.text}: {r} holds {self.cur.get(r)} expected {e}"
            for r in o.wr + o.lwr: self.cur[r] = o.wv
            k = o.kind
            for r in o.wr:
                self.pend.pop(r, None) if not getattr(o, 'nowaw', False) else None
                self.haz[r] = []
            if k in ('dsr', 'dsw', 'dsw64'):
                o.seq = len(self.lg); self.lg.append(o)
                for r in o.wr: self.pend[r] = ('lg', o.seq)
                for t in o.lrd: self.lds_r[t] = o.seq
            if k in ('dma', 'vld', 'st'):
                o.seq = len(self.vm); self.vm.append(o)
                if k == 'vld':
                    for r in o.wr: self.pend[r] = ('vm', o.seq)
                for t in o.lwr: self.lds_w[t] = o.seq
            if k == 'valu':
                for r in o.wr: self.haz[r].append(('valu_sw' if r[0] == 's' or r == 'vcc' else 'valu_w', self.npos, None))
            if k in ('mfma32', 'mfma16'):
                p = 'mf32' if k == 'mfma32' else 'mf16'
                for r in o.wr: self.haz[r].append((p + '_w', self.npos, tuple(o.wr)))
                for r in o.srcc: self.haz.setdefault(r, []).append((p + '_c', self.npos, None))
            if k == 'st':
                for r in o.rd: self.haz.setdefault(r, []).append(('st_r', self.npos, None))
            if k == 'salu' and 'm0' in o.wr: self.haz['m0'].append(('m0_w', self.npos, None))
            self.raw(o.text, o.cost, o.nb)
        if op.kind == 'grp': op.seq = None

def schedule(em, mfmas, ops, cap, bartime=None, t0=0, verbose=False, stamps=None):
    todo = list(ops)
    for i, o in enumerate(todo): o.idx = i
    for g, m in enumerate(mfmas): m.mgap = g
    times = {}; t = t0
    stats = []
    prev_w = False
    n = len(mfmas)
    def ready(o, g):
        if o.est > g: return False
        for (d, dist) in o.deps:
            dg = d.mgap if d.kind in ('mfma32', 'mfma16') else d.gap
            if dg is None or dg + dist > g: return False
        return True
    def ready0(o, g):
        for (d, dist) in o.deps:
            dg = d.mgap if d.kind in ('mfma32', 'mfma16') else d.gap
            if dg is None or dg > g: return False
        return True
    for _ in range(3):
        for o in reversed(todo):
            for (d, dist) in o.deps:
                if d.kind not in ('mfma32', 'mfma16'): d.dl = min(d.dl, o.dl - (0 if o.dl >= INF else min(dist, 1)))
    for g in range(-1, n):
        em.gap = g
        start = len(em.out)
        if g >= 0:
            if stamps and g in stamps: em.raw(stamps[g], cost=1, nb=8)
            em.emit(mfmas[g])
        c = cap(g)
        unlimited = c >= 1000
        used = 0; nbytes = 8
        if g + 1 < n and not unlimited:
            lg, vm = em.need(mfmas[g + 1])
            if lg or vm: used += 1; nbytes += 4
        has_w = False; nds = 0; nplaced = 0
        while True:
            cand = []
            for o in todo:
                forced = o.dl <= g
                if forced:
                    if not ready0(o, g): continue
                elif unlimited:
                    if o.est > g or not ready0(o, g): continue
                elif not ready(o, g): continue
                if o.kind == 'bar' and bartime and o.name in bartime and not forced and not unlimited:
                    if t + 4 * used + 16 < bartime[o.name]: continue
                lg, vm = em.need(o)
                cost = o.cost + (1 if (lg or vm) else 0)
                if not forced and not unlimited:
                    if used + cost > c or nbytes + o.nb > 8 * (c + 2) - 16: continue
                    if o.is_dsw():
                        if prev_w or has_w or nplaced > nds or nds > 1: continue
                    elif o.is_ds():
                        if has_w: continue
                        if nds >= 2: continue
                key = (0 if forced else 1, o.prio, o.dl, o.idx)
                if not forced and not unlimited:
                    if o.is_dsw(): key = (0.6, o.prio, o.dl, o.idx)
                    elif o.is_ds() and prev_w: key = (2, o.prio, o.dl, o.idx)
                cand.append((key, o, cost))
            if not cand: break
            cand.sort(key=lambda x: x[0])
            key, o, cost = cand[0]
            if o.is_dsw() and nplaced == 0 and not unlimited:
                rs = [x for x in cand if x[1].kind == 'dsr' and used + x[2] + cost <= c]
                if rs: key, o, cost = rs[0]
            elif prev_w and not o.is_ds() and not unlimited:
                rs = [x for x in cand if x[1].is_ds() and x[1].prio <= 20]
                if rs and used + cost + rs[0][2] > c: key, o, cost = rs[0]
            todo.remove(o)
            if o.kind == 'bar':
                tb = t + 8 + 4 * used
                if getattr(o, 'tmin', None): tb = max(tb, o.tmin)
                arr = t + 8 + 4 * used
                if bartime and o.name in bartime: tb = max(tb, bartime[o.name])
                times[o.name] = (arr, tb, g)
                t += tb - arr
            em.emit(o)
            used += cost; nbytes += o.nb; nplaced += 1
            if o.is_dsw(): has_w = True
            if o.is_ds(): nds += 1
        prev_w = has_w
        stats.append([g, start, c])
        real = sum(x[2] for x in em.out[start:])
        base = 0 if g < 0 else (32 if mfmas[g].kind == 'mfma32' else 16)
        t += max(base, 4 * real)
        stats[-1] += [real, t]
    assert not todo, "unscheduled: " + str([(o.text, o.est, o.dl) for o in todo[:10]])
    return times, stats, t
```

```python
import copy, sys, json
from sched import *
NAME = "standalone__cross_network_dcn_v2__recsys"
HB = 0; XB = 14336; RB = 67584
def fsw(r): return ((r >> 2) & 1) + 2 * (((r >> 1) ^ (r >> 2) ^ (r >> 3)) & 1)
FT = sum(fsw(r) << (2 * r) for r in range(16))
sW = 3; sX0 = 16; sOUT = 20; sV = [24, 28, 32]; sU = [36, 40, 44]; sB = 48; sP = 52
sK = {k: 55 + k for k in range(1, 7)}
sJ = {j: 61 + j for j in range(1, 6)}
sRing = 69; sMask = 70; sST = [None, 71, 72, 73]; sT0 = 74; sT1 = 75; sFT = 76; sXA = 77
STAMP0 = 78
L16, XW0, XW1, SR, SO, UR0, HW, XR0, XR1 = 255, 254, 253, 252, 251, 250, 249, 248, 247
srd = lambda s: [f"s{s+i}" for i in range(4)]

DEF = dict(stamps=None, rate=1.9, depth=9, nA0=5, xaux="nt", saux="", capM=6, capR32=6, capR16=4, latR=22, rateR=2,
           BH0=40, BH1=62, BX0=88, BX1=19, xfM=8, pf=True, verbose=False, tA=3600, tB=6200)

def valu(text, wr, rd, nb=4, wv=None, ev=None):
    o = Op(text, 'valu', rd=rd, wr=wr, nb=nb); o.wv = wv; o.ev = ev or {}; return o
def salu(text, wr=(), rd=(), nb=4): return Op(text, 'salu', rd=rd, wr=wr, nb=nb)

class Pro:
    def __init__(self, em): self.em = em
    def __call__(self, text):
        for ln in text.strip().split("\n"):
            ln = ln.strip()
            if not ln: continue
            mn, rest = (ln.split(None, 1) + [""])[:2]
            args = [a.strip() for a in rest.split(",")]
            def regs(a):
                a = a.split()[0] if a else a
                if not a: return []
                if a in ('vcc', 'm0', 'exec', 'exec_hi', 'exec_lo'): return [a]
                if a[0] in 'vas' and a[1:].isdigit(): return [a]
                if a[0] in 'vas' and a[1] == '[':
                    lo, hi = a[2:-1].split(':'); return [f"{a[0]}{i}" for i in range(int(lo), int(hi) + 1)]
                return []
            lit = any(a and (a[0].isdigit() or a[0] == '-') and not (-16 <= int(a, 0) <= 64) for a in args if a and (a[0].isdigit() or a[0] == '-') and '.' not in a and ' ' not in a)
            if mn.startswith('v_'):
                o = Op(ln, 'valu', wr=regs(args[0]), rd=sum((regs(a) for a in args[1:]), []), nb=8)
                if mn == 'v_readfirstlane_b32': o.rfl = True
                self.em.emit(o)
            elif mn.startswith('s_') and mn not in ('s_waitcnt', 's_barrier', 's_nop') and not mn.startswith('s_cbranch') and not mn.startswith('s_branch'):
                self.em.emit(Op(ln, 'salu', wr=regs(args[0]) if not mn.startswith('s_cmp') else [], rd=sum((regs(a) for a in args[1:]), []), nb=8 if lit else 4))
            else:
                self.em.raw(ln)

def dma(voff, s, soff, off, lwr=(), aux="", wv=None):
    so = "0" if soff is None else f"s{soff}"
    o = Op(f"buffer_load_dwordx4 v{voff}, s[{s}:{s+3}], {so} offen" + (f" offset:{off}" if off else "") + (f" {aux}" if aux else "") + " lds",
           'dma', rd=[f"v{voff}", 'm0'] + srd(s) + ([] if soff is None else [f"s{soff}"]), lwr=lwr)
    o.wv = wv; return o
def dsr(p, d, addr, off, lrd=(), wv=None, ev=None):
    o = Op(f"ds_read_b128 {p}[{d}:{d+3}], v{addr} offset:{off}", 'dsr', rd=[f"v{addr}"], wr=[f"{p}{d+i}" for i in range(4)], lrd=lrd)
    o.wv = wv; o.ev = ev or {}; return o
def dsw(addr, d, off, ev=None):
    o = Op(f"ds_write_b128 v{addr}, v[{d}:{d+3}] offset:{off}", 'dsw', rd=[f"v{addr}"] + vr(d, 4)); o.ev = ev or {}; return o
def chain(ops, first_deps=(), prio=50, est=-INF, dl=INF):
    prev = None
    for o in ops:
        o.prio = prio; o.est = max(o.est, est); o.dl = min(o.dl, dl)
        if prev is None: o.deps += list(first_deps)
        else: o.deps.append((prev, 0))
        prev = o
    return ops

def x0_dmas(em, P, n, aux):
    ops = []
    for k in range(7):
        if k % 4 == 0:
            P(f"s_add_u32 m0, s{sXA}, {n*26624 + 4096*(k//4)}")
            P(f"s_mov_b32 s{sT0}, {n*26624 + 4096*(k//4)}")
        if k == 6: P("s_mov_b32 exec_hi, 0")
        o = dma(8 + k, sX0, sT0, 1024 * (k % 4), aux=aux); em.emit(o); ops.append(o)
        if k == 6: P("s_mov_b32 exec_hi, -1")
    return ops

def common_prologue(C):
    em = Emitter(); P = Pro(em)
    if C['stamps'] is not None: em.raw(f"s_memtime s[{STAMP0}:{STAMP0+1}]")
    P(f"""s_cmp_ge_u32 s2, 256
s_cbranch_scc1 L_end""")
    em.raw("s_load_dwordx4 s[4:7], s[0:1], 0"); em.raw("s_load_dwordx4 s[8:11], s[0:1], 16"); em.raw("s_load_dwordx2 s[12:13], s[0:1], 32")
    if C['stamps'] is not None: em.raw("s_load_dwordx2 s[14:15], s[0:1], 48")
    P(f"""v_lshrrev_b32 v2, 6, v0
v_and_b32 v1, 63, v0
v_readfirstlane_b32 s{sW}, v2
v_lshlrev_b32 v{L16}, 4, v1
v_mul_u32_u24 v3, 1261, v1
s_and_b32 s{sT0}, s{sW}, 1
s_lshl_b32 s{sT0}, s{sT0}, 4
s_mov_b32 s{sFT}, {FT}
s_lshr_b32 s{sT1}, s{sFT}, s{sT0}""")
    for k in range(7): P(f"v_add_u32 v{8+k}, {64*k*1261}, v3")
    for k in range(7): P(f"v_lshrrev_b32 v{8+k}, 15, v{8+k}")
    for k in range(7): P(f"v_and_b32 v{8+k}, 14, v{8+k}")
    for k in range(7): P(f"v_bfe_u32 v{8+k}, s{sT1}, v{8+k}, 2")
    for k in range(7): P(f"v_xor_b32 v{8+k}, v{8+k}, v1")
    for k in range(7): P(f"v_lshlrev_b32 v{8+k}, 4, v{8+k}")
    P(f"""s_lshr_b32 s{sT0}, s2, 3
s_lshl_b32 s{sT0}, s{sT0}, 7
s_lshr_b32 s{sT1}, s{sW}, 1
s_mul_i32 s{sK[1]}, s{sT1}, {11*4096}
s_add_u32 s{sK[1]}, s{sK[1]}, s{sT0}
s_mul_i32 s{sK[2]}, s{sT1}, {21*4096}
s_add_u32 s{sK[2]}, s{sK[2]}, s{sT0}
s_add_u32 s{sK[2]}, s{sK[2]}, {22*4096}
v_lshlrev_b32 v17, 12, v1
v_add_u32 v16, s{sK[1]}, v17
v_add_u32 v17, s{sK[2]}, v17
s_mul_i32 s{sT0}, s{sW}, 6656
s_add_u32 s{sXA}, s{sT0}, {XB}
s_mul_i32 s{sT1}, s2, 53248
s_add_u32 s{sT0}, s{sT0}, s{sT1}
s_mov_b32 s{sX0+2}, {26624+6656}
s_mov_b32 s{sX0+3}, 0x20000
s_mov_b32 s{sP+2}, 259584
s_mov_b32 s{sP+3}, 0x20000
s_mov_b32 s{sOUT+2}, 53248
s_mov_b32 s{sOUT+3}, 0x20000
s_bitcmp1_b32 s{sW}, 0""")
    em.raw("s_waitcnt lgkmcnt(0)")
    if C['stamps'] is not None: em.raw(f"s_memtime s[{STAMP0+2}:{STAMP0+3}]")
    P(f"""s_cselect_b32 s{sP}, s6, s8
s_cselect_b32 s{sP+1}, s7, s9
s_add_u32 s{sX0}, s4, s{sT0}
s_addc_u32 s{sX0+1}, s5, 0""")
    if C['pf']:
        P("s_mov_b64 exec, 0x7ff")
        em.emit(Op(f"buffer_load_dword v18, v16, s[{sP}:{sP+3}], 0 offen", 'vld', rd=['v16'] + srd(sP), wr=['v18']))
        P("s_mov_b64 exec, -1")
    a = x0_dmas(em, P, 0, C['xaux'])
    P(f"""s_add_u32 s{sOUT}, s12, s{sT1}
s_addc_u32 s{sOUT+1}, s13, 0""")
    P(f"""s_mul_i32 s{sT0}, s{sW}, 26624
s_add_u32 s{sRing}, s{sT0}, {RB}
s_mul_i32 s{sT1}, s{sW}, 19968""")
    for l in range(3):
        P(f"""s_add_u32 s{sV[l]}, s8, s{sT0}
s_addc_u32 s{sV[l]+1}, s9, 0
s_mov_b32 s{sV[l]+3}, 0x20000
s_add_u32 s{sU[l]}, s6, s{sT1}
s_addc_u32 s{sU[l]+1}, s7, 0
s_mov_b32 s{sU[l]+3}, 0x20000""")
        if l < 2: P(f"s_add_u32 s{sT0}, s{sT0}, 86528\ns_add_u32 s{sT1}, s{sT1}, 86528")
    P(f"""s_mul_i32 s{sT0}, s{sW}, 192
s_add_u32 s{sB}, s10, s{sT0}
s_addc_u32 s{sB+1}, s11, 0
s_sub_u32 s{sB+2}, 2496, s{sT0}
s_mov_b32 s{sB+3}, 0x20000
s_mov_b32 s{sMask}, 0xffff0000""")
    for k in range(1, 7): P(f"s_mov_b32 s{sK[k]}, {4096*k}")
    for i in range(1, 4): P(f"s_mov_b32 s{sST[i]}, {13312*i}")
    P(f"""v_and_b32 v4, 31, v1
v_lshrrev_b32 v5, 5, v1
v_and_b32 v6, 19, v4
v_and_b32 v7, 4, v4
v_lshl_or_b32 v6, v7, 1, v6
v_and_b32 v7, 8, v4
v_lshrrev_b32 v7, 1, v7
v_or_b32 v6, v6, v7
v_lshlrev_b32 v7, 1, v4
v_bfe_u32 v7, s{sFT}, v7, 2
v_xor_b32 v7, v7, v5
v_mul_u32_u24 v19, 832, v4
v_lshl_add_u32 v19, v7, 4, v19
v_add_u32 v{XR0}, {XB}, v19
v_add_u32 v{XW0}, s{sT0}, v{XR0}
v_xor_b32 v{XW1}, 32, v{XW0}
v_lshrrev_b32 v7, 2, v1
v_mul_u32_u24 v19, 832, v7
v_add_u32 v19, s{sT0}, v19
v_and_b32 v20, 3, v1
v_lshl_add_u32 v{SR}, v20, 4, v19
v_add_u32 v{SR}, {XB}, v{SR}
v_lshlrev_b32 v7, 1, v7
v_bfe_u32 v7, s{sFT}, v7, 2
v_xor_b32 v7, v7, v20
v_lshl_add_u32 v{SO}, v7, 4, v19
v_mul_u32_u24 v19, 208, v6
v_lshl_add_u32 v19, v5, 4, v19
v_add_u32 v{UR0}, s{sRing}, v19
v_lshlrev_b32 v21, 1, v6
v_mov_b32 v24, 0x3f80
v_mov_b32 v25, 0
v_mov_b32 v26, 0
v_mov_b32 v27, 0""")
    hc = [dsw(L16, 24, HB + 6144), dsw(L16, 24, HB + 6144 + 7168)]
    for o in hc: em.emit(o)
    P(f"s_cmp_eq_u32 s{sW}, 3")
    em.raw("s_cbranch_scc1 L_R")
    return em, a, hc

def bias_loads(em, P, UA, nt):
    P("s_mov_b32 exec_lo, 0")
    for t in range(nt):
        f6 = UA + 28 * t + 24
        for l, (mn, r) in enumerate((("buffer_load_ushort", f6), ("buffer_load_ushort", f6 + 1), ("buffer_load_ushort", f6 + 2))):
            em.emit(Op(f"{mn} a{r}, v21, s[{sB}:{sB+3}], 0 offen offset:{832*l + 64*t}", 'vld', rd=['v21'] + srd(sB), wr=[f"a{r}"]))
    P("s_mov_b32 exec_lo, -1")
    for t in range(nt):
        f6 = UA + 28 * t + 24
        P(f"v_accvgpr_write_b32 a{f6+3}, 0")

def burst2(em, P, C):
    if C['pf']:
        P("s_mov_b64 exec, 0x1fffff")
        em.emit(Op(f"buffer_load_dword v18, v17, s[{sP}:{sP+3}], 0 offen", 'vld', rd=['v17'] + srd(sP), wr=['v18']))
        P("s_mov_b64 exec, -1")
    return x0_dmas(em, P, 1, C['xaux'])

def uread(UA, l, t, s, base, blocks):
    ev = {b: v for b, v in blocks}
    o = dsr('a', UA + 28 * t + 4 * s, UR0, base + 32 * s, lrd=[b for b, v in blocks], wv=('U', l, t, s), ev=ev)
    if s == 6:
        o.nowaw = True
        return Op("", 'grp', sub=[salu("s_mov_b32 exec_hi, 0"), o, salu("s_mov_b32 exec_hi, -1")])
    return o

def build(typ, em, a_ops, hc, C, bartime=None):
    M = typ == 'M'
    P = Pro(em)
    NT = 3 if M else 4
    Y = lambda n, t: (n * NT + t) * 16
    if M:
        X0F = lambda n, t: ('v', 96 + (n * 3 + t) * 16)
        ACC = [192, 208]; PK = [224, 228]; TM = [232, 233]
        VR = list(range(239, 247)); VD = list(range(234, 239))
        VA, UA, HF, XF, NXF = 0, 104, 188, 216, C['xfM']
    else:
        X0F = lambda n, t: ('v', 128 + (n * 4 + t) * 16) if n * 4 + t < 6 else ('a', 216 + (n * 4 + t - 6) * 16)
        ACC = [224, 232]; PK = [240, 240]; TM = [244, 245]
        VA, UA, HF, XF, NXF = 0, 52, 164, 192, 6
        VRR = XR1
    ops = []
    if M:
        for l in range(3): P(f"s_mov_b32 s{sV[l]+2}, 26624\ns_mov_b32 s{sU[l]+2}, 19968")
        for j in range(1, 6): P(f"s_mov_b32 s{sJ[j]}, {128*j}")
        P(f"""v_lshrrev_b32 v7, 4, v1
v_and_b32 v19, 7, v1
v_xor_b32 v20, v19, v7
v_mul_u32_u24 v7, 1664, v7
v_lshl_add_u32 v7, v20, 4, v7
v_bfe_u32 v20, v1, 3, 1
v_mul_u32_u24 v20, 768, v20
v_add_u32 v{VD[0]}, v7, v20
v_xor_b32 v{VD[1]}, 64, v{VD[0]}
v_add_u32 v{VD[1]}, 5632, v{VD[1]}
v_add_u32 v{VD[2]}, 11264, v{VD[0]}
v_add_u32 v{VD[3]}, 11264, v{VD[1]}
v_lshrrev_b32 v7, 3, v1
v_xor_b32 v20, v19, v7
v_mul_u32_u24 v7, 1664, v7
v_lshl_add_u32 v7, v20, 4, v7
v_add_u32 v{VD[4]}, 1536, v7""")
    else:
        for l in range(3): P(f"s_mov_b32 s{sV[l]+2}, 6656\ns_mov_b32 s{sU[l]+2}, 6656")
        sUT = {}
        idx = sJ[1]
        for t in range(4):
            for h in range(2):
                v = 6656 * t + 4096 * h
                if v == 0: sUT[(t, h)] = None
                elif v == 4096: sUT[(t, h)] = sK[1]
                else:
                    P(f"s_mov_b32 s{idx}, {v}"); sUT[(t, h)] = idx; idx += 1
        assert idx <= sRing
    bias_loads(em, P, UA, NT)
    def m0op(off):
        if M:
            if off == 0: return salu(f"s_mov_b32 m0, s{sRing}", wr=['m0'], rd=[f"s{sRing}"])
            return salu(f"s_add_u32 m0, s{sRing}, s{sK[off//4096]}", wr=['m0'])
        return salu(f"s_mov_b32 m0, {RB + 3*26624 + off}", wr=['m0'], nb=8)
    stream = []
    vd = {}; ud = {}
    slot_of = {}
    if M:
        for l in range(3):
            stream.append(m0op(24576))
            vd[(l, 6)] = [dma(VD[4], sV[l], None, 0, lwr=[('b', 24)], wv=('V', l)), dma(VD[4], sV[l], sK[3], 1024, lwr=[('b', 25)], wv=('V', l))]
            stream += vd[(l, 6)]
            for j in range(6):
                stream.append(m0op(4096 * j))
                vd[(l, j)] = [dma(VD[u], sV[l], sJ.get(j), 1024 * u, lwr=[('b', 4 * j + u)], wv=('V', l)) for u in range(4)]
                stream += vd[(l, j)]
            for j in range(20):
                if j % 4 == 0: stream.append(m0op(1024 * j))
                ud[(l, j)] = dma(L16, sU[l], sK.get(j // 4), 1024 * (j % 4), lwr=[('b', j)], wv=('U', l))
                stream.append(ud[(l, j)])
        npro = 26
    else:
        it = 0
        for l in range(3):
            for item in ['V', 0, 1, 2, 3]:
                sl = it % 2; it += 1; slot_of[(l, item)] = sl
                lst = []
                if item not in ('V', 0): stream.append(salu(f"s_mov_b32 s{sU[l]+2}, {6656*(item+1)}", wr=[f"s{sU[l]+2}"], nb=8))
                for j in range(7):
                    if j % 4 == 0: stream.append(m0op(7168 * sl + 1024 * j))
                    if item == 'V': o = dma(L16, sV[l], sK.get(j // 4), 1024 * (j % 4), lwr=[('b', 7 * sl + j)], wv=('V', l))
                    else: o = dma(L16, sU[l], sUT[(item, j // 4)], 1024 * (j % 4), lwr=[('b', 7 * sl + j)], wv=('U', l, item))
                    stream.append(o); lst.append(o)
                vd[(l, item)] = lst
        npro = 14
    k = 0
    while k < npro:
        o = stream.pop(0); em.emit(o)
        if o.kind == 'dma': k += 1
        if k == 8 and o.kind == 'dma':
            if M:
                P(f"""v_xor_b32 v{XR1}, 32, v{XR0}
s_lshl_b32 s{sT0}, s{sW}, 11
v_add_u32 v{HW}, s{sT0}, v{L16}
v_and_b32 v7, 1, v4
v_lshl_add_u32 v19, v7, 2, v5
v_bfe_u32 v20, v6, 1, 3
v_xor_b32 v19, v19, v20
v_lshlrev_b32 v19, 4, v19
v_add_u32 v19, s{sRing}, v19
v_lshl_add_u32 v{VR[0]}, v6, 7, v19
v_xor_b32 v{VR[1]}, 32, v{VR[0]}
v_xor_b32 v{VR[2]}, 64, v{VR[0]}
v_lshl_add_u32 v{VR[2]}, v7, 12, v{VR[2]}
v_xor_b32 v{VR[3]}, 32, v{VR[2]}
v_lshrrev_b32 v20, 1, v6
v_lshl_add_u32 v20, v20, 7, v19
v_add_u32 v20, 24576, v20
v_cmp_eq_u32 vcc, 1, v7
v_add_u32 v22, 20480, v{VR[0]}
v_add_u32 v23, 128, v{VR[0]}
v_cndmask_b32 v22, v22, v20, vcc
v_cndmask_b32 v{VR[6]}, v23, v20, vcc
v_xor_b32 v{VR[4]}, 64, v22
v_xor_b32 v{VR[5]}, 32, v{VR[4]}
v_xor_b32 v{VR[7]}, 32, v{VR[6]}""")
            else:
                P(f"""v_and_b32 v7, 15, v1
v_lshrrev_b32 v19, 4, v1
v_lshlrev_b32 v20, 1, v7
v_bfe_u32 v20, s{sFT}, v20, 2
v_xor_b32 v20, v20, v19
v_mul_u32_u24 v22, 832, v7
v_lshl_add_u32 v22, v20, 4, v22
v_add_u32 v{XR0}, {XB}, v22
v_and_b32 v20, 1, v19
v_lshlrev_b32 v20, 3, v20
v_lshl_add_u32 v20, v7, 4, v20
v_add_u32 v{HW}, {HB + 6144}, v20
v_and_b32 v7, 7, v1
v_mul_u32_u24 v22, 832, v7
v_lshl_add_u32 v22, v19, 4, v22
v_add_u32 v{VRR}, s{sRing}, v22""")
    em.emit(Op("s_barrier", 'bar', needs=a_ops + hc))
    if C['stamps'] is not None: em.raw(f"s_memtime s[{STAMP0+4}:{STAMP0+5}]")
    b_ops = burst2(em, P, C)
    order = []
    for l in range(3): order += [('G1', l, 0), ('G1', l, 1), ('G2', l, 0), ('G2', l, 1)]
    korder = [24, 25] + list(range(24))
    mf = []; start = {}; g1 = {}; g2 = {}
    xi = 0; xreads = []
    for (kd, l, n) in order:
        start[(kd, l, n)] = len(mf)
        if kd == 'G1':
            for i in range(26):
                xs = XF + 4 * (xi % NXF)
                if M:
                    s = korder[i]; d = ACC[n]; nd = 16; first = i == 0; cnt = i
                    rd_ = dsr('a', xs, XR1 if s & 1 else XR0, n * 26624 + 64 * (s >> 1), wv=('X', l, n, i))
                    mn = 'v_mfma_f32_32x32x16_bf16'; kind = 'mfma32'
                else:
                    s = i >> 1; hf = i & 1; d = ACC[n] + 4 * hf; nd = 4; first = i < 2; cnt = s
                    rd_ = dsr('a', xs, XR0, n * 26624 + hf * 13312 + 64 * s, wv=('X', l, n, i))
                    mn = 'v_mfma_f32_16x16x32_bf16'; kind = 'mfma16'
                c = "0" if first else rng('v', d, nd)
                m = Op(f"{mn} {rng('v', d, nd)}, a[{VA+4*s}:{VA+4*s+3}], a[{xs}:{xs+3}], {c}", kind,
                       rd=ar(VA + 4 * s, 4) + ar(xs, 4) + ([] if first else vr(d, nd)), wr=vr(d, nd), srcc=[] if first else vr(d, nd))
                m.wv = ('acc', l, n, cnt + 1)
                m.ev = {r: ('V', l, s) for r in ar(VA + 4 * s, 4)}
                m.ev.update({r: ('X', l, n, i) for r in ar(xs, 4)})
                if not first: m.ev.update({r: ('acc', l, n, cnt) for r in vr(d, nd)})
                g1[(l, n, i)] = m; xreads.append((rd_, m, l, n, i)); m.g = len(mf); mf.append(m); xi += 1
        else:
            for t in range(NT):
                for s in range(7):
                    d = Y(n, t); first = l == 0 and s == 0
                    ua = UA + 28 * t + 4 * s; h = HF + 4 * s
                    c = "1.0" if first else rng('v', d, 16)
                    m = Op(f"v_mfma_f32_32x32x16_bf16 {rng('v', d, 16)}, a[{ua}:{ua+3}], a[{h}:{h+3}], {c}", 'mfma32',
                           rd=ar(ua, 4) + ar(h, 4) + ([] if first else vr(d, 16)), wr=vr(d, 16), srcc=[] if first else vr(d, 16))
                    m.wv = ('Y', n, t, 7 * l + s + 1)
                    m.ev = {r: ('U', l, t, s) for r in ar(ua, 4)}
                    m.ev.update({r: ('H', l, n, s) for r in ar(h, 4)})
                    if not first: m.ev.update({r: ('Y', n, t, 7 * l + s) for r in vr(d, 16)})
                    g2[(l, n, t, s)] = m; m.g = len(mf); mf.append(m)
    NG = len(mf)
    lead = 3 if M else 4
    bars = {}
    def bar(name, est):
        b = Op("s_barrier", 'bar', name=name); b.prio = 15
        if M: b.est = est; b.dl = est
        bars[name] = b; return b
    gB0 = start[('G1', 0, 1)] - 1
    bb = bar('Bb', gB0); bb.est = gB0; bb.dl = INF; bb.prio = 90; bb.needs = list(b_ops); bb.tmin = C['tB']
    for l in range(3):
        G = start[('G1', l, 0)]
        if l > 0: bar(f'H0{l}', G + C['BH0'])
        bar(f'H1{l}', G + C['BH1'])
        if l < 2:
            bar(f'X0{l}', G + C['BX0']); bar(f'X1{l}', start[('G1', l + 1, 0)] + C['BX1'])
    bars['H00'] = bb
    blist = ['Bb', 'H10', 'X00', 'X10', 'H01', 'H11', 'X01', 'X11', 'H02', 'H12']
    for i in range(1, len(blist)): bars[blist[i]].deps.append((bars[blist[i - 1]], 0))
    ops += [bars[b] for b in blist]
    def xbar(l, n):
        if l == 0: return None if n == 0 else bb
        return bars[f'X{n}{l-1}']
    prev = None
    for idx, (r, m, l, n, i) in enumerate(xreads):
        r.prio = 10; r.dl = m.g - lead if not (l == 0 and n == 1 and i < lead) else INF
        if idx >= NXF: r.deps.append((xreads[idx - NXF][1], 0))
        if prev: r.deps.append((prev, 0))
        if xbar(l, n): r.deps.append((xbar(l, n), 0))
        if l == 0 and n == 1: r.prio = 95 if i < NXF else 10
        prev = r; ops.append(r)
    for l in range(3):
        for n in range(2):
            last = g1[(l, n, 25)]
            ch = []
            if M:
                A_ = ACC[n]
                for hf in range(2):
                    for j in range(4 * hf, 4 * hf + 4):
                        ch.append(valu(f"v_cvt_pk_bf16_f32 v{A_+j}, v{A_+2*j}, v{A_+2*j+1}", vr(A_ + j), vr(A_ + 2 * j, 2), nb=8, wv=('hp', l, n),
                                       ev={r: ('acc', l, n, 26) for r in vr(A_ + 2 * j, 2)}))
                    ch.append(dsw(HW, A_ + 4 * hf, HB + 7168 * n + 1024 * hf, ev={r: ('hp', l, n) for r in vr(A_ + 4 * hf, 4)}))
                w0 = ch.pop(4)
                chain(ch, [(last, 2)], prio=15)
                w0.prio = 15; w0.deps.append((ch[3], 0)); ch[-1].deps.append((w0, 0)); ch.insert(4, w0)
                ws = [w0, ch[-1]]
            else:
                ws = []
                for hf in range(2):
                    A_ = ACC[n] + 4 * hf
                    for j in range(2):
                        ch.append(valu(f"v_cvt_pk_bf16_f32 v{A_+j}, v{A_+2*j}, v{A_+2*j+1}", vr(A_ + j), vr(A_ + 2 * j, 2), nb=8, wv=('hp', l, n),
                                       ev={r: ('acc', l, n, 13) for r in vr(A_ + 2 * j, 2)}))
                for hf in range(2):
                    A_ = ACC[n] + 4 * hf
                    w = Op(f"ds_write_b64 v{HW}, v[{A_}:{A_+1}] offset:{7168*n + 256*hf}", 'dsw64', rd=vr(HW) + vr(A_, 2))
                    w.ev = {r: ('hp', l, n) for r in vr(A_, 2)}
                    ch.append(w); ws.append(w)
                chain(ch, [(last, 2)], prio=15)
            ops += ch
            b = bars[f'H{n}{l}']
            b.needs += ws; b.deps += [(w, 2) for w in ws]
            prev = None
            for s in range(7):
                r = dsr('a', HF + 4 * s, L16, HB + 7168 * n + 1024 * s, wv=('H', l, n, s))
                r.prio = 12; r.dl = g2[(l, n, 0, s)].g - lead
                r.deps.append((b, 0))
                if n == 1: r.deps.append((g2[(l, 0, NT - 1, s)], 0))
                elif l > 0: r.deps.append((g2[(l - 1, 1, NT - 1, s)], 0))
                if l == 0 and n == 0: r.est = gB0 + 1
                if prev: r.deps.append((prev, 0))
                prev = r; ops.append(r)
    vrd = {}; urd = {}
    lat = round(C['depth'] * C['rate']) if M else C['latR']
    for l in range(3):
        if M:
            for i, s in enumerate(korder):
                if s < 22: ad, off = VR[s & 3], 4096 * (s >> 2); pcs = {s >> 2, (s + 2) >> 2}
                elif s < 24: ad, off = VR[4 + s - 22], 0; pcs = {5, 6}
                else: ad, off = VR[6 + s - 24], 0; pcs = {0, 6}
                blocks = [('b', 4 * p + u) for p in pcs for u in range(4 if p < 6 else 2)]
                r = dsr('a', VA + 4 * s, ad, off, lrd=blocks, wv=('V', l, s), ev={b: ('V', l) for b in blocks})
                r.dl = g1[(l, 0, i)].g - lead
                if l > 0:
                    r.deps.append((g1[(l - 1, 1, i)], 0))
                    r.deps += [(vd[(l, p)][-1], lat) for p in pcs]
                vrd[(l, i)] = r
            for t in range(3):
                js = range(6656 * t // 1024, (6656 * (t + 1) + 1023) // 1024)
                blocks = [(('b', j), ('U', l)) for j in js]
                for s in range(7):
                    r = uread(UA, l, t, s, 6656 * t, blocks)
                    r.dl = g2[(l, 0, t, s)].g - lead
                    if l > 0: r.deps.append((g2[(l - 1, 1, t, s)], 0))
                    r.deps.append((ud[(l, js[-1])], lat))
                    if l == 0: r.est = gB0 + 1 + round((js[-1] + 1) * C['rate'])
                    r.blocks = [b for b, v in blocks]
                    urd[(l, t, s)] = r
        else:
            sl = slot_of[(l, 'V')]
            blocks = [('b', 7 * sl + j) for j in range(7)]
            for s in range(13):
                r = dsr('a', VA + 4 * s, VRR, 7168 * sl + 64 * s, lrd=blocks, wv=('V', l, s), ev={b: ('V', l) for b in blocks})
                r.dl = g1[(l, 0, 2 * s)].g - lead
                if l > 0:
                    r.deps.append((g1[(l - 1, 1, 2 * s + 1)], 0)); r.deps.append((vd[(l, 'V')][-1], lat))
                vrd[(l, s)] = r
            for t in range(4):
                sl = slot_of[(l, t)]
                blocks = [(('b', 7 * sl + j), ('U', l, t)) for j in range(7)]
                for s in range(7):
                    r = uread(UA, l, t, s, 7168 * sl, blocks)
                    r.dl = g2[(l, 0, t, s)].g - lead
                    if l > 0: r.deps.append((g2[(l - 1, 1, t, s)], 0))
                    if (l, t) != (0, 0): r.deps.append((vd[(l, t)][-1], lat))
                    if l == 0 and t > 0: r.est = gB0 + 1 + 10 * t
                    r.blocks = [b for b, v in blocks]
                    urd[(l, t, s)] = r
    rdseq = []
    for l in range(3):
        rdseq += [vrd[k_] for k_ in sorted(vrd) if k_[0] == l] + [urd[k_] for k_ in sorted(urd) if k_[0] == l]
    for r in rdseq:
        if not hasattr(r, 'blocks'): r.blocks = r.lrd
    chain(rdseq, prio=25)
    ops += rdseq
    val_of = lambda r: (r.sub[1] if r.kind == 'grp' else r)
    k = 0; prev = None; rate = C['rate'] if M else C['rateR']
    cur = {}
    for b in range(26): cur[('b', b)] = em.cur.get(('b', b))
    nA0 = C['nA0']; depth = C['depth']
    pend_salu = []
    for o in stream:
        o.prio = 20
        if prev: o.deps.append((prev, 1 if (prev.kind == 'salu' and 'm0' in prev.wr) else 0))
        if o.kind == 'dma':
            b = o.lwr[0]
            old = cur.get(b)
            lastr = None
            for r in rdseq:
                if b in r.blocks and val_of(r).ev[b] == old: lastr = r
            if lastr: o.deps.append((lastr, 2))
            cur[b] = o.wv
            if k < nA0: o.est = 6 + 3 * k
            elif k < depth: o.est = gB0
            else: o.est = gB0 + 1 + int((k - depth) * rate) if M else gB0 + 1
            if not M and k >= depth and prev.kind == 'dma': o.deps.append((prev, rate))
            for ps in pend_salu: ps.est = o.est - 1
            pend_salu = []
            if k < depth: bb.deps.append((o, 0))
            k += 1
        else: pend_salu.append(o)
        prev = o
    ops += stream
    x0done = {}
    for n in range(2):
        for t in range(NT):
            p, base = X0F(n, t)
            src = base + 8 if p == 'v' else Y(n, t)
            rds = [dsr('v', src + 4 * h, XW1 if h else XW0, n * 26624 + 64 * t, wv=('x0p', n, t)) for h in range(2)]
            ch = []
            for j in range(8):
                ev = {f"v{src+j}": ('x0p', n, t)}
                if p == 'v':
                    ch.append(valu(f"v_lshlrev_b32 v{base+2*j}, 16, v{src+j}", vr(base + 2 * j), vr(src + j), wv=('x0', n, t), ev=ev))
                    ch.append(valu(f"v_and_b32 v{base+2*j+1}, s{sMask}, v{src+j}", vr(base + 2 * j + 1), vr(src + j), wv=('x0', n, t), ev=ev))
                else:
                    ch.append(valu(f"v_lshlrev_b32 v{src+8}, 16, v{src+j}", vr(src + 8), vr(src + j), ev=ev))
                    ch.append(valu(f"v_and_b32 v{src+9}, s{sMask}, v{src+j}", vr(src + 9), vr(src + j), ev=ev))
                    ch.append(valu(f"v_accvgpr_write_b32 a{base+2*j}, v{src+8}", ar(base + 2 * j), vr(src + 8), nb=8, wv=('x0', n, t)))
                    ch.append(valu(f"v_accvgpr_write_b32 a{base+2*j+1}, v{src+9}", ar(base + 2 * j + 1), vr(src + 9), nb=8, wv=('x0', n, t)))
            chain(rds, [(bb, 1)] if n else [], prio=44, est=0 if n == 0 else gB0 + 1)
            chain(ch, [(rds[1], 3)], prio=45, dl=g2[(0, n, t, 0)].g - 2)
            if n == 0: bb.deps.append((ch[-1], 0))
            ops += rds + ch; x0done[(n, t)] = ch[-1]
    prevop = None; lastw = [None, None]; hi = 0
    for (kd, l, n) in order:
        if kd != 'G2': continue
        for t in range(NT):
            p, base = X0F(n, t); y = Y(n, t)
            wr_ = []
            for h in range(2):
                pk = PK[hi % 2]; ch = []
                for j in range(4):
                    e = 8 * h + 2 * j
                    evy = lambda q: {f"v{y+q}": ('Y', n, t, 7 * l + 7)}
                    if p == 'v':
                        ch.append(valu(f"v_mul_f32 v{TM[0]}, v{base+e}, v{y+e}", vr(TM[0]), vr(base + e) + vr(y + e), ev={**evy(e), f"v{base+e}": ('x0', n, t)}))
                        ch.append(valu(f"v_mul_f32 v{TM[1]}, v{base+e+1}, v{y+e+1}", vr(TM[1]), vr(base + e + 1) + vr(y + e + 1), ev={**evy(e + 1), f"v{base+e+1}": ('x0', n, t)}))
                    else:
                        ch.append(valu(f"v_accvgpr_read_b32 v{TM[0]}, a{base+e}", vr(TM[0]), ar(base + e), nb=8, ev={f"a{base+e}": ('x0', n, t)}))
                        ch.append(valu(f"v_accvgpr_read_b32 v{TM[1]}, a{base+e+1}", vr(TM[1]), ar(base + e + 1), nb=8, ev={f"a{base+e+1}": ('x0', n, t)}))
                        ch.append(valu(f"v_mul_f32 v{TM[0]}, v{TM[0]}, v{y+e}", vr(TM[0]), vr(TM[0]) + vr(y + e), ev=evy(e)))
                        ch.append(valu(f"v_mul_f32 v{TM[1]}, v{TM[1]}, v{y+e+1}", vr(TM[1]), vr(TM[1]) + vr(y + e + 1), ev=evy(e + 1)))
                    cv = valu(f"v_cvt_pk_bf16_f32 v{pk+j}, v{TM[0]}, v{TM[1]}", vr(pk + j), vr(TM[0], 2), nb=8, wv=('xp', l, n, t, h))
                    lw = lastw[hi % 2 if M else 0]
                    if j == 0 and lw: cv.deps.append((lw, 0))
                    ch.append(cv)
                fd = [(g2[(l, n, t, 6)], 2)]
                if l == 0: fd.append((x0done[(n, t)], 0))
                if prevop: fd.append((prevop, 0))
                chain(ch, fd, prio=40)
                w = dsw(XW1 if h else XW0, pk, n * 26624 + 64 * t, ev={r: ('xp', l, n, t, h) for r in vr(pk, 4)})
                w.prio = 39; w.deps.append((ch[-1], 0)); w.deps.append((bars[f'H{n}{l}'], 0))
                if wr_: w.deps.append((wr_[-1], 0))
                lastw[hi % 2 if M else 0] = w; prevop = ch[-1]; hi += 1
                ops += ch + [w]; wr_.append(w)
            if l < 2:
                b = bars[f'X{n}{l}']; b.needs += wr_; b.deps += [(w, 2) for w in wr_]
            else:
                for h in range(2):
                    r = dsr('v', y + 4 * h, SR, n * 26624 + h * 13312 + 64 * t, wv=('o', n, t, h))
                    r.prio = 30; r.deps.append((wr_[1], 1))
                    so = sST[2 * n + h]
                    st = Op(f"buffer_store_dwordx4 v[{y+4*h}:{y+4*h+3}], v{SO}, s[{sOUT}:{sOUT+3}], {'0' if so is None else 's%d' % so} offen offset:{64*t}" + (f" {C['saux']}" if C['saux'] else ""),
                            'st', rd=vr(y + 4 * h, 4) + vr(SO) + srd(sOUT))
                    st.ev = {q: ('o', n, t, h) for q in vr(y + 4 * h, 4)}
                    st.prio = 30; st.deps.append((r, 3))
                    ops += [r, st]
    if M:
        for l in (1, 2):
            T = ACC[1]
            if l == 1:
                ch = [valu(f"v_mov_b32 v{T}, 0", vr(T), []), valu(f"v_mov_b32 v{T+1}, 0x3f80", vr(T + 1), [], nb=8)]
                ws = [Op(f"ds_write_b64 v{L16}, v[{T}:{T+1}] offset:{HB + 6144 + 7168*n}", 'dsw64', rd=vr(L16) + vr(T, 2)) for n in range(2)]
            else:
                ch = [valu(f"v_mov_b32 v{T}, 0", vr(T), []), valu(f"v_mov_b32 v{T+1}, 0", vr(T + 1), []), valu(f"v_mov_b32 v{T+2}, 0x3f80", vr(T + 2), [], nb=8)]
                ws = [Op(f"ds_write_b96 v{L16}, v[{T}:{T+2}] offset:{HB + 6144 + 7168*n}", 'dsw64', rd=vr(L16) + vr(T, 3), cost=4) for n in range(2)]
            chain(ch + ws, [(bars[f'X0{l-1}'], 0)], prio=35)
            b = bars[f'X1{l-1}']; b.needs += ws; b.deps += [(w, 2) for w in ws]
            ops += ch + ws
    def cap(g):
        if g == -1: return 10
        if g == gB0 or g == NG - 1: return 10000
        if M: return C['capM']
        return C['capR32'] if mf[g].kind == 'mfma32' else C['capR16']
    stamps = None
    if C['stamps'] is not None:
        stamps = {}
        for i, key in enumerate(C['stamps']):
            stamps[start[tuple(key)]] = f"s_memtime s[{STAMP0+6+2*i}:{STAMP0+7+2*i}]"
    times, stats, tend = schedule(em, mf, ops, cap, bartime=bartime, t0=C['tA'], stamps=stamps)
    if C['stamps'] is not None:
        ns = 3 + len(C['stamps'])
        em.raw(f"s_memtime s[{STAMP0+2*ns}:{STAMP0+2*ns+1}]"); ns += 1
        em.raw("s_waitcnt vmcnt(0)")
        em.raw(f"s_memtime s[{STAMP0+2*ns}:{STAMP0+2*ns+1}]"); ns += 1
        assert STAMP0 + 2 * ns <= 102
        em.raw("s_waitcnt lgkmcnt(0)")
        em.raw(f"s_mov_b32 s16, s14\ns_mov_b32 s17, s15\ns_mov_b32 s18, 65536\ns_mov_b32 s19, 0x20000")
        em.raw(f"s_lshl_b32 s20, s2, 2\ns_add_u32 s20, s20, s{sW}\ns_lshl_b32 s20, s20, 6\nv_mov_b32 v1, s20\ns_mov_b64 exec, 1")
        for i in range(ns):
            em.raw(f"v_mov_b32 v0, s{STAMP0+2*i}\ns_nop 1\nbuffer_store_dword v0, v1, s[16:19], 0 offen offset:{4*i}\ns_nop 1")
    em.raw("s_endpgm")
    return times, stats, tend, start

def gen(**kw):
    C = dict(DEF); C.update(kw)
    em, a, hc = common_prologue(C)
    ncom = len(em.out)
    emM = copy.deepcopy(em); emR = copy.deepcopy(em)
    tM, stM, eM, startM = build('M', emM, a, hc, C)
    tR, stR, eR, startR = build('R', emR, a, hc, C, bartime={k: v[1] for k, v in tM.items()})
    if C['verbose']:
        print("M barriers", tM, "end", eM, "waits", emM.nwait, "nops", emM.nnop, "bytes", sum(x[3] for x in emM.out))
        print("R barriers", tR, "end", eR, "waits", emR.nwait, "nops", emR.nnop, "bytes", sum(x[3] for x in emR.out))
        print("M fill", " ".join(str(s[3]) for s in stM))
        print("R fill", " ".join(str(s[3]) for s in stR))
        print("M phase t", {k: stM[v][4] for k, v in startM.items()})
        print("R phase t", {k: stR[v][4] for k, v in startR.items()})
    L = ["; DCN-v2 cross network, generated by gen/fast.py",
         "; @launch grid=(256,1,1) block=(256,1,1) lds=163840",
         '.amdgcn_target "amdgcn-amd-amdhsa--gfx950"', ".text", f".globl {NAME}_kernel", ".p2align 8",
         f".type {NAME}_kernel,@function", f"{NAME}_kernel:"]
    def dump(out):
        g = None
        for (t, gap, c, nb) in out:
            if gap != g and C['verbose']: L.append(f"; gap {gap}"); g = gap
            L.append(t)
    dump(emM.out)
    L.append("L_R:")
    dump(emR.out[ncom:])
    L.append("L_end:\ns_endpgm")
    L.append(f'.section .rodata,"a"\n.p2align 6\n.amdhsa_kernel {NAME}_kernel\n  .amdhsa_next_free_vgpr 512\n  .amdhsa_next_free_sgpr 102\n  .amdhsa_accum_offset 256\n  .amdhsa_group_segment_fixed_size 0\n  .amdhsa_kernarg_size 56\n  .amdhsa_user_sgpr_count 2\n  .amdhsa_user_sgpr_kernarg_segment_ptr 1\n  .amdhsa_system_sgpr_workgroup_id_x 1\n.end_amdhsa_kernel')
    return "\n".join(L) + "\n"

if __name__ == "__main__":
    kw = json.loads(sys.argv[2]) if len(sys.argv) > 2 else {}
    s = gen(verbose=True, **kw)
    open(sys.argv[1] if len(sys.argv) > 1 else "fast.s", "w").write(s)
```

```python
import copy, sys, json
from sched import *
NAME = "standalone__cross_network_dcn_v2__recsys"
HB = 0; XB = 14336; RB = 67584
def fsw(r): return ((r >> 2) & 1) + 2 * (((r >> 1) ^ (r >> 2) ^ (r >> 3)) & 1)
FT = sum(fsw(r) << (2 * r) for r in range(16))
sW = 3; sX0 = 16; sOUT = 20; sV = [24, 28, 32]; sU = [36, 40, 44]; sB = 48; sP = 52
sK = {k: 55 + k for k in range(1, 7)}
sJ = {j: 61 + j for j in range(1, 6)}
sRing = 69; sMask = 70; sST = [None, 71, 72, 73]; sT0 = 74; sT1 = 75; sFT = 76; sXA = 77
STAMP0 = 78
L16, XW0, XW1, SR, SO, UR0, HW, XR0, XR1 = 255, 254, 253, 252, 251, 250, 249, 248, 247
srd = lambda s: [f"s{s+i}" for i in range(4)]

DEF = dict(stamps=None, rate=1.9, depth=9, nA0=5, xaux="nt", saux="", capM=6, capR32=6, capR16=4, latR=22, rateR=2,
           BH0=40, BH1=62, BX0=88, BX1=19, xfM=8, pf=True, verbose=False, tA=3600, tB=6200)

def valu(text, wr, rd, nb=4, wv=None, ev=None):
    o = Op(text, 'valu', rd=rd, wr=wr, nb=nb); o.wv = wv; o.ev = ev or {}; return o
def salu(text, wr=(), rd=(), nb=4): return Op(text, 'salu', rd=rd, wr=wr, nb=nb)

class Pro:
    def __init__(self, em): self.em = em
    def __call__(self, text):
        for ln in text.strip().split("\n"):
            ln = ln.strip()
            if not ln: continue
            mn, rest = (ln.split(None, 1) + [""])[:2]
            args = [a.strip() for a in rest.split(",")]
            def regs(a):
                a = a.split()[0] if a else a
                if not a: return []
                if a in ('vcc', 'm0', 'exec', 'exec_hi', 'exec_lo'): return [a]
                if a[0] in 'vas' and a[1:].isdigit(): return [a]
                if a[0] in 'vas' and a[1] == '[':
                    lo, hi = a[2:-1].split(':'); return [f"{a[0]}{i}" for i in range(int(lo), int(hi) + 1)]
                return []
            lit = any(a and (a[0].isdigit() or a[0] == '-') and not (-16 <= int(a, 0) <= 64) for a in args if a and (a[0].isdigit() or a[0] == '-') and '.' not in a and ' ' not in a)
            if mn.startswith('v_'):
                o = Op(ln, 'valu', wr=regs(args[0]), rd=sum((regs(a) for a in args[1:]), []), nb=8)
                if mn == 'v_readfirstlane_b32': o.rfl = True
                self.em.emit(o)
            elif mn.startswith('s_') and mn not in ('s_waitcnt', 's_barrier', 's_nop') and not mn.startswith('s_cbranch') and not mn.startswith('s_branch'):
                self.em.emit(Op(ln, 'salu', wr=regs(args[0]) if not mn.startswith('s_cmp') else [], rd=sum((regs(a) for a in args[1:]), []), nb=8 if lit else 4))
            else:
                self.em.raw(ln)

def dma(voff, s, soff, off, lwr=(), aux="", wv=None):
    so = "0" if soff is None else f"s{soff}"
    o = Op(f"buffer_load_dwordx4 v{voff}, s[{s}:{s+3}], {so} offen" + (f" offset:{off}" if off else "") + (f" {aux}" if aux else "") + " lds",
           'dma', rd=[f"v{voff}", 'm0'] + srd(s) + ([] if soff is None else [f"s{soff}"]), lwr=lwr)
    o.wv = wv; return o
def dsr(p, d, addr, off, lrd=(), wv=None, ev=None):
    o = Op(f"ds_read_b128 {p}[{d}:{d+3}], v{addr} offset:{off}", 'dsr', rd=[f"v{addr}"], wr=[f"{p}{d+i}" for i in range(4)], lrd=lrd)
    o.wv = wv; o.ev = ev or {}; return o
def dsw(addr, d, off, ev=None):
    o = Op(f"ds_write_b128 v{addr}, v[{d}:{d+3}] offset:{off}", 'dsw', rd=[f"v{addr}"] + vr(d, 4)); o.ev = ev or {}; return o
def chain(ops, first_deps=(), prio=50, est=-INF, dl=INF):
    prev = None
    for o in ops:
        o.prio = prio; o.est = max(o.est, est); o.dl = min(o.dl, dl)
        if prev is None: o.deps += list(first_deps)
        else: o.deps.append((prev, 0))
        prev = o
    return ops

def x0_dmas(em, P, n, aux):
    ops = []
    for k in range(7):
        if k % 4 == 0:
            P(f"s_add_u32 m0, s{sXA}, {n*26624 + 4096*(k//4)}")
            P(f"s_mov_b32 s{sT0}, {n*26624 + 4096*(k//4)}")
        if k == 6: P("s_mov_b32 exec_hi, 0")
        o = dma(8 + k, sX0, sT0, 1024 * (k % 4), aux=aux); em.emit(o); ops.append(o)
        if k == 6: P("s_mov_b32 exec_hi, -1")
    return ops

def common_prologue(C):
    em = Emitter(); P = Pro(em)
    if C['stamps'] is not None:
        em.raw(f"s_memtime s[{STAMP0}:{STAMP0+1}]"); em.raw("s_memrealtime s[98:99]")
    P(f"""s_cmp_ge_u32 s2, 256
s_cbranch_scc1 L_end""")
    em.raw("s_load_dwordx4 s[4:7], s[0:1], 0"); em.raw("s_load_dwordx4 s[8:11], s[0:1], 16"); em.raw("s_load_dwordx2 s[12:13], s[0:1], 32")
    if C['stamps'] is not None: em.raw("s_load_dwordx2 s[14:15], s[0:1], 48")
    P(f"""v_lshrrev_b32 v2, 6, v0
v_and_b32 v1, 63, v0
v_readfirstlane_b32 s{sW}, v2
v_lshlrev_b32 v{L16}, 4, v1
v_mul_u32_u24 v3, 1261, v1
s_and_b32 s{sT0}, s{sW}, 1
s_lshl_b32 s{sT0}, s{sT0}, 4
s_mov_b32 s{sFT}, {FT}
s_lshr_b32 s{sT1}, s{sFT}, s{sT0}""")
    for k in range(7): P(f"v_add_u32 v{8+k}, {64*k*1261}, v3")
    for k in range(7): P(f"v_lshrrev_b32 v{8+k}, 15, v{8+k}")
    for k in range(7): P(f"v_and_b32 v{8+k}, 14, v{8+k}")
    for k in range(7): P(f"v_bfe_u32 v{8+k}, s{sT1}, v{8+k}, 2")
    for k in range(7): P(f"v_xor_b32 v{8+k}, v{8+k}, v1")
    for k in range(7): P(f"v_lshlrev_b32 v{8+k}, 4, v{8+k}")
    P(f"""s_lshr_b32 s{sT0}, s2, 3
s_lshl_b32 s{sT0}, s{sT0}, 7
s_lshr_b32 s{sT1}, s{sW}, 1
s_mul_i32 s{sK[1]}, s{sT1}, {11*4096}
s_add_u32 s{sK[1]}, s{sK[1]}, s{sT0}
s_mul_i32 s{sK[2]}, s{sT1}, {21*4096}
s_add_u32 s{sK[2]}, s{sK[2]}, s{sT0}
s_add_u32 s{sK[2]}, s{sK[2]}, {22*4096}
v_lshlrev_b32 v17, 12, v1
v_add_u32 v16, s{sK[1]}, v17
v_add_u32 v17, s{sK[2]}, v17
s_mul_i32 s{sT0}, s{sW}, 6656
s_add_u32 s{sXA}, s{sT0}, {XB}
s_mul_i32 s{sT1}, s2, 53248
s_add_u32 s{sT0}, s{sT0}, s{sT1}
s_mov_b32 s{sX0+2}, {26624+6656}
s_mov_b32 s{sX0+3}, 0x20000
s_mov_b32 s{sP+2}, 259584
s_mov_b32 s{sP+3}, 0x20000
s_mov_b32 s{sOUT+2}, 53248
s_mov_b32 s{sOUT+3}, 0x20000
s_bitcmp1_b32 s{sW}, 0""")
    em.raw("s_waitcnt lgkmcnt(0)")
    if C['stamps'] is not None: em.raw(f"s_memtime s[{STAMP0+2}:{STAMP0+3}]")
    P(f"""s_cselect_b32 s{sP}, s6, s8
s_cselect_b32 s{sP+1}, s7, s9
s_add_u32 s{sX0}, s4, s{sT0}
s_addc_u32 s{sX0+1}, s5, 0""")
    if C['pf']:
        P("s_mov_b64 exec, 0x7ff")
        em.emit(Op(f"buffer_load_dword v18, v16, s[{sP}:{sP+3}], 0 offen", 'vld', rd=['v16'] + srd(sP), wr=['v18']))
        P("s_mov_b64 exec, -1")
    a = x0_dmas(em, P, 0, C['xaux'])
    P(f"""s_add_u32 s{sOUT}, s12, s{sT1}
s_addc_u32 s{sOUT+1}, s13, 0""")
    P(f"""s_mul_i32 s{sT0}, s{sW}, 26624
s_add_u32 s{sRing}, s{sT0}, {RB}
s_mul_i32 s{sT1}, s{sW}, 19968""")
    for l in range(3):
        P(f"""s_add_u32 s{sV[l]}, s8, s{sT0}
s_addc_u32 s{sV[l]+1}, s9, 0
s_mov_b32 s{sV[l]+3}, 0x20000
s_add_u32 s{sU[l]}, s6, s{sT1}
s_addc_u32 s{sU[l]+1}, s7, 0
s_mov_b32 s{sU[l]+3}, 0x20000""")
        if l < 2: P(f"s_add_u32 s{sT0}, s{sT0}, 86528\ns_add_u32 s{sT1}, s{sT1}, 86528")
    P(f"""s_mul_i32 s{sT0}, s{sW}, 192
s_add_u32 s{sB}, s10, s{sT0}
s_addc_u32 s{sB+1}, s11, 0
s_sub_u32 s{sB+2}, 2496, s{sT0}
s_mov_b32 s{sB+3}, 0x20000
s_mov_b32 s{sMask}, 0xffff0000""")
    for k in range(1, 7): P(f"s_mov_b32 s{sK[k]}, {4096*k}")
    for i in range(1, 4): P(f"s_mov_b32 s{sST[i]}, {13312*i}")
    P(f"""v_and_b32 v4, 31, v1
v_lshrrev_b32 v5, 5, v1
v_and_b32 v6, 19, v4
v_and_b32 v7, 4, v4
v_lshl_or_b32 v6, v7, 1, v6
v_and_b32 v7, 8, v4
v_lshrrev_b32 v7, 1, v7
v_or_b32 v6, v6, v7
v_lshlrev_b32 v7, 1, v4
v_bfe_u32 v7, s{sFT}, v7, 2
v_xor_b32 v7, v7, v5
v_mul_u32_u24 v19, 832, v4
v_lshl_add_u32 v19, v7, 4, v19
v_add_u32 v{XR0}, {XB}, v19
v_add_u32 v{XW0}, s{sT0}, v{XR0}
v_xor_b32 v{XW1}, 32, v{XW0}
v_lshrrev_b32 v7, 2, v1
v_mul_u32_u24 v19, 832, v7
v_add_u32 v19, s{sT0}, v19
v_and_b32 v20, 3, v1
v_lshl_add_u32 v{SR}, v20, 4, v19
v_add_u32 v{SR}, {XB}, v{SR}
v_lshlrev_b32 v7, 1, v7
v_bfe_u32 v7, s{sFT}, v7, 2
v_xor_b32 v7, v7, v20
v_lshl_add_u32 v{SO}, v7, 4, v19
v_mul_u32_u24 v19, 208, v6
v_lshl_add_u32 v19, v5, 4, v19
v_add_u32 v{UR0}, s{sRing}, v19
v_lshlrev_b32 v21, 1, v6
v_mov_b32 v24, 0x3f80
v_mov_b32 v25, 0
v_mov_b32 v26, 0
v_mov_b32 v27, 0""")
    hc = [dsw(L16, 24, HB + 6144), dsw(L16, 24, HB + 6144 + 7168)]
    for o in hc: em.emit(o)
    P(f"s_cmp_eq_u32 s{sW}, 3")
    em.raw("s_cbranch_scc1 L_R")
    return em, a, hc

def bias_loads(em, P, UA, nt):
    P("s_mov_b32 exec_lo, 0")
    for t in range(nt):
        f6 = UA + 28 * t + 24
        for l, (mn, r) in enumerate((("buffer_load_ushort", f6), ("buffer_load_ushort", f6 + 1), ("buffer_load_ushort", f6 + 2))):
            em.emit(Op(f"{mn} a{r}, v21, s[{sB}:{sB+3}], 0 offen offset:{832*l + 64*t}", 'vld', rd=['v21'] + srd(sB), wr=[f"a{r}"]))
    P("s_mov_b32 exec_lo, -1")
    for t in range(nt):
        f6 = UA + 28 * t + 24
        P(f"v_accvgpr_write_b32 a{f6+3}, 0")

def burst2(em, P, C):
    if C['pf']:
        P("s_mov_b64 exec, 0x1fffff")
        em.emit(Op(f"buffer_load_dword v18, v17, s[{sP}:{sP+3}], 0 offen", 'vld', rd=['v17'] + srd(sP), wr=['v18']))
        P("s_mov_b64 exec, -1")
    return x0_dmas(em, P, 1, C['xaux'])

def uread(UA, l, t, s, base, blocks):
    ev = {b: v for b, v in blocks}
    o = dsr('a', UA + 28 * t + 4 * s, UR0, base + 32 * s, lrd=[b for b, v in blocks], wv=('U', l, t, s), ev=ev)
    if s == 6:
        o.nowaw = True
        return Op("", 'grp', sub=[salu("s_mov_b32 exec_hi, 0"), o, salu("s_mov_b32 exec_hi, -1")])
    return o

def build(typ, em, a_ops, hc, C, bartime=None):
    M = typ == 'M'
    P = Pro(em)
    NT = 3 if M else 4
    Y = lambda n, t: (n * NT + t) * 16
    if M:
        X0F = lambda n, t: ('v', 96 + (n * 3 + t) * 16)
        ACC = [192, 208]; PK = [224, 228]; TM = [232, 233]
        VR = list(range(239, 247)); VD = list(range(234, 239))
        VA, UA, HF, XF, NXF = 0, 104, 188, 216, C['xfM']
    else:
        X0F = lambda n, t: ('v', 128 + (n * 4 + t) * 16) if n * 4 + t < 6 else ('a', 216 + (n * 4 + t - 6) * 16)
        ACC = [224, 232]; PK = [240, 240]; TM = [244, 245]
        VA, UA, HF, XF, NXF = 0, 52, 164, 192, 6
        VRR = XR1
    ops = []
    if M:
        for l in range(3): P(f"s_mov_b32 s{sV[l]+2}, 26624\ns_mov_b32 s{sU[l]+2}, 19968")
        for j in range(1, 6): P(f"s_mov_b32 s{sJ[j]}, {128*j}")
        P(f"""v_lshrrev_b32 v7, 4, v1
v_and_b32 v19, 7, v1
v_xor_b32 v20, v19, v7
v_mul_u32_u24 v7, 1664, v7
v_lshl_add_u32 v7, v20, 4, v7
v_bfe_u32 v20, v1, 3, 1
v_mul_u32_u24 v20, 768, v20
v_add_u32 v{VD[0]}, v7, v20
v_xor_b32 v{VD[1]}, 64, v{VD[0]}
v_add_u32 v{VD[1]}, 5632, v{VD[1]}
v_add_u32 v{VD[2]}, 11264, v{VD[0]}
v_add_u32 v{VD[3]}, 11264, v{VD[1]}
v_lshrrev_b32 v7, 3, v1
v_xor_b32 v20, v19, v7
v_mul_u32_u24 v7, 1664, v7
v_lshl_add_u32 v7, v20, 4, v7
v_add_u32 v{VD[4]}, 1536, v7""")
    else:
        for l in range(3): P(f"s_mov_b32 s{sV[l]+2}, 6656\ns_mov_b32 s{sU[l]+2}, 6656")
        sUT = {}
        idx = sJ[1]
        for t in range(4):
            for h in range(2):
                v = 6656 * t + 4096 * h
                if v == 0: sUT[(t, h)] = None
                elif v == 4096: sUT[(t, h)] = sK[1]
                else:
                    P(f"s_mov_b32 s{idx}, {v}"); sUT[(t, h)] = idx; idx += 1
        assert idx <= sRing
    bias_loads(em, P, UA, NT)
    def m0op(off):
        if M:
            if off == 0: return salu(f"s_mov_b32 m0, s{sRing}", wr=['m0'], rd=[f"s{sRing}"])
            return salu(f"s_add_u32 m0, s{sRing}, s{sK[off//4096]}", wr=['m0'])
        return salu(f"s_mov_b32 m0, {RB + 3*26624 + off}", wr=['m0'], nb=8)
    stream = []
    vd = {}; ud = {}
    slot_of = {}
    if M:
        for l in range(3):
            stream.append(m0op(24576))
            vd[(l, 6)] = [dma(VD[4], sV[l], None, 0, lwr=[('b', 24)], wv=('V', l)), dma(VD[4], sV[l], sK[3], 1024, lwr=[('b', 25)], wv=('V', l))]
            stream += vd[(l, 6)]
            for j in range(6):
                stream.append(m0op(4096 * j))
                vd[(l, j)] = [dma(VD[u], sV[l], sJ.get(j), 1024 * u, lwr=[('b', 4 * j + u)], wv=('V', l)) for u in range(4)]
                stream += vd[(l, j)]
            for j in range(20):
                if j % 4 == 0: stream.append(m0op(1024 * j))
                ud[(l, j)] = dma(L16, sU[l], sK.get(j // 4), 1024 * (j % 4), lwr=[('b', j)], wv=('U', l))
                stream.append(ud[(l, j)])
        npro = 26
    else:
        it = 0
        for l in range(3):
            for item in ['V', 0, 1, 2, 3]:
                sl = it % 2; it += 1; slot_of[(l, item)] = sl
                lst = []
                if item not in ('V', 0): stream.append(salu(f"s_mov_b32 s{sU[l]+2}, {6656*(item+1)}", wr=[f"s{sU[l]+2}"], nb=8))
                for j in range(7):
                    if j % 4 == 0: stream.append(m0op(7168 * sl + 1024 * j))
                    if item == 'V': o = dma(L16, sV[l], sK.get(j // 4), 1024 * (j % 4), lwr=[('b', 7 * sl + j)], wv=('V', l))
                    else: o = dma(L16, sU[l], sUT[(item, j // 4)], 1024 * (j % 4), lwr=[('b', 7 * sl + j)], wv=('U', l, item))
                    stream.append(o); lst.append(o)
                vd[(l, item)] = lst
        npro = 14
    k = 0
    while k < npro:
        o = stream.pop(0); em.emit(o)
        if o.kind == 'dma': k += 1
        if k == 8 and o.kind == 'dma':
            if M:
                P(f"""v_xor_b32 v{XR1}, 32, v{XR0}
s_lshl_b32 s{sT0}, s{sW}, 11
v_add_u32 v{HW}, s{sT0}, v{L16}
v_and_b32 v7, 1, v4
v_lshl_add_u32 v19, v7, 2, v5
v_bfe_u32 v20, v6, 1, 3
v_xor_b32 v19, v19, v20
v_lshlrev_b32 v19, 4, v19
v_add_u32 v19, s{sRing}, v19
v_lshl_add_u32 v{VR[0]}, v6, 7, v19
v_xor_b32 v{VR[1]}, 32, v{VR[0]}
v_xor_b32 v{VR[2]}, 64, v{VR[0]}
v_lshl_add_u32 v{VR[2]}, v7, 12, v{VR[2]}
v_xor_b32 v{VR[3]}, 32, v{VR[2]}
v_lshrrev_b32 v20, 1, v6
v_lshl_add_u32 v20, v20, 7, v19
v_add_u32 v20, 24576, v20
v_cmp_eq_u32 vcc, 1, v7
v_add_u32 v22, 20480, v{VR[0]}
v_add_u32 v23, 128, v{VR[0]}
v_cndmask_b32 v22, v22, v20, vcc
v_cndmask_b32 v{VR[6]}, v23, v20, vcc
v_xor_b32 v{VR[4]}, 64, v22
v_xor_b32 v{VR[5]}, 32, v{VR[4]}
v_xor_b32 v{VR[7]}, 32, v{VR[6]}""")
            else:
                P(f"""v_and_b32 v7, 15, v1
v_lshrrev_b32 v19, 4, v1
v_lshlrev_b32 v20, 1, v7
v_bfe_u32 v20, s{sFT}, v20, 2
v_xor_b32 v20, v20, v19
v_mul_u32_u24 v22, 832, v7
v_lshl_add_u32 v22, v20, 4, v22
v_add_u32 v{XR0}, {XB}, v22
v_and_b32 v20, 1, v19
v_lshlrev_b32 v20, 3, v20
v_lshl_add_u32 v20, v7, 4, v20
v_add_u32 v{HW}, {HB + 6144}, v20
v_and_b32 v7, 7, v1
v_mul_u32_u24 v22, 832, v7
v_lshl_add_u32 v22, v19, 4, v22
v_add_u32 v{VRR}, s{sRing}, v22""")
    em.emit(Op("s_barrier", 'bar', needs=a_ops + hc))
    if C['stamps'] is not None: em.raw(f"s_memtime s[{STAMP0+4}:{STAMP0+5}]")
    b_ops = burst2(em, P, C)
    order = []
    for l in range(3): order += [('G1', l, 0), ('G1', l, 1), ('G2', l, 0), ('G2', l, 1)]
    korder = [24, 25] + list(range(24))
    mf = []; start = {}; g1 = {}; g2 = {}
    xi = 0; xreads = []
    for (kd, l, n) in order:
        start[(kd, l, n)] = len(mf)
        if kd == 'G1':
            for i in range(26):
                xs = XF + 4 * (xi % NXF)
                if M:
                    s = korder[i]; d = ACC[n]; nd = 16; first = i == 0; cnt = i
                    rd_ = dsr('a', xs, XR1 if s & 1 else XR0, n * 26624 + 64 * (s >> 1), wv=('X', l, n, i))
                    mn = 'v_mfma_f32_32x32x16_bf16'; kind = 'mfma32'
                else:
                    s = i >> 1; hf = i & 1; d = ACC[n] + 4 * hf; nd = 4; first = i < 2; cnt = s
                    rd_ = dsr('a', xs, XR0, n * 26624 + hf * 13312 + 64 * s, wv=('X', l, n, i))
                    mn = 'v_mfma_f32_16x16x32_bf16'; kind = 'mfma16'
                c = "0" if first else rng('v', d, nd)
                m = Op(f"{mn} {rng('v', d, nd)}, a[{VA+4*s}:{VA+4*s+3}], a[{xs}:{xs+3}], {c}", kind,
                       rd=ar(VA + 4 * s, 4) + ar(xs, 4) + ([] if first else vr(d, nd)), wr=vr(d, nd), srcc=[] if first else vr(d, nd))
                m.wv = ('acc', l, n, cnt + 1)
                m.ev = {r: ('V', l, s) for r in ar(VA + 4 * s, 4)}
                m.ev.update({r: ('X', l, n, i) for r in ar(xs, 4)})
                if not first: m.ev.update({r: ('acc', l, n, cnt) for r in vr(d, nd)})
                g1[(l, n, i)] = m; xreads.append((rd_, m, l, n, i)); m.g = len(mf); mf.append(m); xi += 1
        else:
            for t in range(NT):
                for s in range(7):
                    d = Y(n, t); first = l == 0 and s == 0
                    ua = UA + 28 * t + 4 * s; h = HF + 4 * s
                    c = "1.0" if first else rng('v', d, 16)
                    m = Op(f"v_mfma_f32_32x32x16_bf16 {rng('v', d, 16)}, a[{ua}:{ua+3}], a[{h}:{h+3}], {c}", 'mfma32',
                           rd=ar(ua, 4) + ar(h, 4) + ([] if first else vr(d, 16)), wr=vr(d, 16), srcc=[] if first else vr(d, 16))
                    m.wv = ('Y', n, t, 7 * l + s + 1)
                    m.ev = {r: ('U', l, t, s) for r in ar(ua, 4)}
                    m.ev.update({r: ('H', l, n, s) for r in ar(h, 4)})
                    if not first: m.ev.update({r: ('Y', n, t, 7 * l + s) for r in vr(d, 16)})
                    g2[(l, n, t, s)] = m; m.g = len(mf); mf.append(m)
    NG = len(mf)
    lead = 3 if M else 4
    bars = {}
    def bar(name, est):
        b = Op("s_barrier", 'bar', name=name); b.prio = 15
        if M: b.est = est; b.dl = est
        bars[name] = b; return b
    gB0 = start[('G1', 0, 1)] - 1
    bb = bar('Bb', gB0); bb.est = gB0; bb.dl = INF; bb.prio = 90; bb.needs = list(b_ops); bb.tmin = C['tB']
    for l in range(3):
        G = start[('G1', l, 0)]
        if l > 0: bar(f'H0{l}', G + C['BH0'])
        bar(f'H1{l}', G + C['BH1'])
        if l < 2:
            bar(f'X0{l}', G + C['BX0']); bar(f'X1{l}', start[('G1', l + 1, 0)] + C['BX1'])
    bars['H00'] = bb
    blist = ['Bb', 'H10', 'X00', 'X10', 'H01', 'H11', 'X01', 'X11', 'H02', 'H12']
    for i in range(1, len(blist)): bars[blist[i]].deps.append((bars[blist[i - 1]], 0))
    ops += [bars[b] for b in blist]
    def xbar(l, n):
        if l == 0: return None if n == 0 else bb
        return bars[f'X{n}{l-1}']
    prev = None
    for idx, (r, m, l, n, i) in enumerate(xreads):
        r.prio = 10; r.dl = m.g - lead if not (l == 0 and n == 1 and i < lead) else INF
        if idx >= NXF: r.deps.append((xreads[idx - NXF][1], 0))
        if prev: r.deps.append((prev, 0))
        if xbar(l, n): r.deps.append((xbar(l, n), 0))
        if l == 0 and n == 1: r.prio = 95 if i < NXF else 10
        prev = r; ops.append(r)
    for l in range(3):
        for n in range(2):
            last = g1[(l, n, 25)]
            ch = []
            if M:
                A_ = ACC[n]
                for hf in range(2):
                    for j in range(4 * hf, 4 * hf + 4):
                        ch.append(valu(f"v_cvt_pk_bf16_f32 v{A_+j}, v{A_+2*j}, v{A_+2*j+1}", vr(A_ + j), vr(A_ + 2 * j, 2), nb=8, wv=('hp', l, n),
                                       ev={r: ('acc', l, n, 26) for r in vr(A_ + 2 * j, 2)}))
                    ch.append(dsw(HW, A_ + 4 * hf, HB + 7168 * n + 1024 * hf, ev={r: ('hp', l, n) for r in vr(A_ + 4 * hf, 4)}))
                w0 = ch.pop(4)
                chain(ch, [(last, 2)], prio=15)
                w0.prio = 15; w0.deps.append((ch[3], 0)); ch[-1].deps.append((w0, 0)); ch.insert(4, w0)
                ws = [w0, ch[-1]]
            else:
                ws = []
                for hf in range(2):
                    A_ = ACC[n] + 4 * hf
                    for j in range(2):
                        ch.append(valu(f"v_cvt_pk_bf16_f32 v{A_+j}, v{A_+2*j}, v{A_+2*j+1}", vr(A_ + j), vr(A_ + 2 * j, 2), nb=8, wv=('hp', l, n),
                                       ev={r: ('acc', l, n, 13) for r in vr(A_ + 2 * j, 2)}))
                for hf in range(2):
                    A_ = ACC[n] + 4 * hf
                    w = Op(f"ds_write_b64 v{HW}, v[{A_}:{A_+1}] offset:{7168*n + 256*hf}", 'dsw64', rd=vr(HW) + vr(A_, 2))
                    w.ev = {r: ('hp', l, n) for r in vr(A_, 2)}
                    ch.append(w); ws.append(w)
                chain(ch, [(last, 2)], prio=15)
            ops += ch
            b = bars[f'H{n}{l}']
            b.needs += ws; b.deps += [(w, 2) for w in ws]
            prev = None
            for s in range(7):
                r = dsr('a', HF + 4 * s, L16, HB + 7168 * n + 1024 * s, wv=('H', l, n, s))
                r.prio = 12; r.dl = g2[(l, n, 0, s)].g - lead
                r.deps.append((b, 0))
                if n == 1: r.deps.append((g2[(l, 0, NT - 1, s)], 0))
                elif l > 0: r.deps.append((g2[(l - 1, 1, NT - 1, s)], 0))
                if l == 0 and n == 0: r.est = gB0 + 1
                if prev: r.deps.append((prev, 0))
                prev = r; ops.append(r)
    vrd = {}; urd = {}
    lat = round(C['depth'] * C['rate']) if M else C['latR']
    for l in range(3):
        if M:
            for i, s in enumerate(korder):
                if s < 22: ad, off = VR[s & 3], 4096 * (s >> 2); pcs = {s >> 2, (s + 2) >> 2}
                elif s < 24: ad, off = VR[4 + s - 22], 0; pcs = {5, 6}
                else: ad, off = VR[6 + s - 24], 0; pcs = {0, 6}
                blocks = [('b', 4 * p + u) for p in pcs for u in range(4 if p < 6 else 2)]
                r = dsr('a', VA + 4 * s, ad, off, lrd=blocks, wv=('V', l, s), ev={b: ('V', l) for b in blocks})
                r.dl = g1[(l, 0, i)].g - lead
                if l > 0:
                    r.deps.append((g1[(l - 1, 1, i)], 0))
                    r.deps += [(vd[(l, p)][-1], lat) for p in pcs]
                vrd[(l, i)] = r
            for t in range(3):
                js = range(6656 * t // 1024, (6656 * (t + 1) + 1023) // 1024)
                blocks = [(('b', j), ('U', l)) for j in js]
                for s in range(7):
                    r = uread(UA, l, t, s, 6656 * t, blocks)
                    r.dl = g2[(l, 0, t, s)].g - lead
                    if l > 0: r.deps.append((g2[(l - 1, 1, t, s)], 0))
                    r.deps.append((ud[(l, js[-1])], lat))
                    if l == 0: r.est = gB0 + 1 + round((js[-1] + 1) * C['rate'])
                    r.blocks = [b for b, v in blocks]
                    urd[(l, t, s)] = r
        else:
            sl = slot_of[(l, 'V')]
            blocks = [('b', 7 * sl + j) for j in range(7)]
            for s in range(13):
                r = dsr('a', VA + 4 * s, VRR, 7168 * sl + 64 * s, lrd=blocks, wv=('V', l, s), ev={b: ('V', l) for b in blocks})
                r.dl = g1[(l, 0, 2 * s)].g - lead
                if l > 0:
                    r.deps.append((g1[(l - 1, 1, 2 * s + 1)], 0)); r.deps.append((vd[(l, 'V')][-1], lat))
                vrd[(l, s)] = r
            for t in range(4):
                sl = slot_of[(l, t)]
                blocks = [(('b', 7 * sl + j), ('U', l, t)) for j in range(7)]
                for s in range(7):
                    r = uread(UA, l, t, s, 7168 * sl, blocks)
                    r.dl = g2[(l, 0, t, s)].g - lead
                    if l > 0: r.deps.append((g2[(l - 1, 1, t, s)], 0))
                    if (l, t) != (0, 0): r.deps.append((vd[(l, t)][-1], lat))
                    if l == 0 and t > 0: r.est = gB0 + 1 + 10 * t
                    r.blocks = [b for b, v in blocks]
                    urd[(l, t, s)] = r
    rdseq = []
    for l in range(3):
        rdseq += [vrd[k_] for k_ in sorted(vrd) if k_[0] == l] + [urd[k_] for k_ in sorted(urd) if k_[0] == l]
    for r in rdseq:
        if not hasattr(r, 'blocks'): r.blocks = r.lrd
    chain(rdseq, prio=25)
    ops += rdseq
    val_of = lambda r: (r.sub[1] if r.kind == 'grp' else r)
    k = 0; prev = None; rate = C['rate'] if M else C['rateR']
    cur = {}
    for b in range(26): cur[('b', b)] = em.cur.get(('b', b))
    nA0 = C['nA0']; depth = C['depth']
    pend_salu = []
    for o in stream:
        o.prio = 20
        if prev: o.deps.append((prev, 1 if (prev.kind == 'salu' and 'm0' in prev.wr) else 0))
        if o.kind == 'dma':
            b = o.lwr[0]
            old = cur.get(b)
            lastr = None
            for r in rdseq:
                if b in r.blocks and val_of(r).ev[b] == old: lastr = r
            if lastr: o.deps.append((lastr, 2))
            cur[b] = o.wv
            if k < nA0: o.est = 6 + 3 * k
            elif k < depth: o.est = gB0
            else: o.est = gB0 + 1 + int((k - depth) * rate) if M else gB0 + 1
            if not M and k >= depth and prev.kind == 'dma': o.deps.append((prev, rate))
            for ps in pend_salu: ps.est = o.est - 1
            pend_salu = []
            if k < depth: bb.deps.append((o, 0))
            k += 1
        else: pend_salu.append(o)
        prev = o
    ops += stream
    x0done = {}
    for n in range(2):
        for t in range(NT):
            p, base = X0F(n, t)
            src = base + 8 if p == 'v' else Y(n, t)
            rds = [dsr('v', src + 4 * h, XW1 if h else XW0, n * 26624 + 64 * t, wv=('x0p', n, t)) for h in range(2)]
            ch = []
            for j in range(8):
                ev = {f"v{src+j}": ('x0p', n, t)}
                if p == 'v':
                    ch.append(valu(f"v_lshlrev_b32 v{base+2*j}, 16, v{src+j}", vr(base + 2 * j), vr(src + j), wv=('x0', n, t), ev=ev))
                    ch.append(valu(f"v_and_b32 v{base+2*j+1}, s{sMask}, v{src+j}", vr(base + 2 * j + 1), vr(src + j), wv=('x0', n, t), ev=ev))
                else:
                    ch.append(valu(f"v_lshlrev_b32 v{src+8}, 16, v{src+j}", vr(src + 8), vr(src + j), ev=ev))
                    ch.append(valu(f"v_and_b32 v{src+9}, s{sMask}, v{src+j}", vr(src + 9), vr(src + j), ev=ev))
                    ch.append(valu(f"v_accvgpr_write_b32 a{base+2*j}, v{src+8}", ar(base + 2 * j), vr(src + 8), nb=8, wv=('x0', n, t)))
                    ch.append(valu(f"v_accvgpr_write_b32 a{base+2*j+1}, v{src+9}", ar(base + 2 * j + 1), vr(src + 9), nb=8, wv=('x0', n, t)))
            chain(rds, [(bb, 1)] if n else [], prio=44, est=0 if n == 0 else gB0 + 1)
            chain(ch, [(rds[1], 3)], prio=45, dl=g2[(0, n, t, 0)].g - 2)
            if n == 0: bb.deps.append((ch[-1], 0))
            ops += rds + ch; x0done[(n, t)] = ch[-1]
    prevop = None; lastw = [None, None]; hi = 0
    for (kd, l, n) in order:
        if kd != 'G2': continue
        for t in range(NT):
            p, base = X0F(n, t); y = Y(n, t)
            wr_ = []
            for h in range(2):
                pk = PK[hi % 2]; ch = []
                for j in range(4):
                    e = 8 * h + 2 * j
                    evy = lambda q: {f"v{y+q}": ('Y', n, t, 7 * l + 7)}
                    if p == 'v':
                        ch.append(valu(f"v_mul_f32 v{TM[0]}, v{base+e}, v{y+e}", vr(TM[0]), vr(base + e) + vr(y + e), ev={**evy(e), f"v{base+e}": ('x0', n, t)}))
                        ch.append(valu(f"v_mul_f32 v{TM[1]}, v{base+e+1}, v{y+e+1}", vr(TM[1]), vr(base + e + 1) + vr(y + e + 1), ev={**evy(e + 1), f"v{base+e+1}": ('x0', n, t)}))
                    else:
                        ch.append(valu(f"v_accvgpr_read_b32 v{TM[0]}, a{base+e}", vr(TM[0]), ar(base + e), nb=8, ev={f"a{base+e}": ('x0', n, t)}))
                        ch.append(valu(f"v_accvgpr_read_b32 v{TM[1]}, a{base+e+1}", vr(TM[1]), ar(base + e + 1), nb=8, ev={f"a{base+e+1}": ('x0', n, t)}))
                        ch.append(valu(f"v_mul_f32 v{TM[0]}, v{TM[0]}, v{y+e}", vr(TM[0]), vr(TM[0]) + vr(y + e), ev=evy(e)))
                        ch.append(valu(f"v_mul_f32 v{TM[1]}, v{TM[1]}, v{y+e+1}", vr(TM[1]), vr(TM[1]) + vr(y + e + 1), ev=evy(e + 1)))
                    cv = valu(f"v_cvt_pk_bf16_f32 v{pk+j}, v{TM[0]}, v{TM[1]}", vr(pk + j), vr(TM[0], 2), nb=8, wv=('xp', l, n, t, h))
                    lw = lastw[hi % 2 if M else 0]
                    if j == 0 and lw: cv.deps.append((lw, 0))
                    ch.append(cv)
                fd = [(g2[(l, n, t, 6)], 2)]
                if l == 0: fd.append((x0done[(n, t)], 0))
                if prevop: fd.append((prevop, 0))
                chain(ch, fd, prio=40)
                w = dsw(XW1 if h else XW0, pk, n * 26624 + 64 * t, ev={r: ('xp', l, n, t, h) for r in vr(pk, 4)})
                w.prio = 39; w.deps.append((ch[-1], 0)); w.deps.append((bars[f'H{n}{l}'], 0))
                if wr_: w.deps.append((wr_[-1], 0))
                lastw[hi % 2 if M else 0] = w; prevop = ch[-1]; hi += 1
                ops += ch + [w]; wr_.append(w)
            if l < 2:
                b = bars[f'X{n}{l}']; b.needs += wr_; b.deps += [(w, 2) for w in wr_]
            else:
                for h in range(2):
                    r = dsr('v', y + 4 * h, SR, n * 26624 + h * 13312 + 64 * t, wv=('o', n, t, h))
                    r.prio = 30; r.deps.append((wr_[1], 1))
                    so = sST[2 * n + h]
                    st = Op(f"buffer_store_dwordx4 v[{y+4*h}:{y+4*h+3}], v{SO}, s[{sOUT}:{sOUT+3}], {'0' if so is None else 's%d' % so} offen offset:{64*t}" + (f" {C['saux']}" if C['saux'] else ""),
                            'st', rd=vr(y + 4 * h, 4) + vr(SO) + srd(sOUT))
                    st.ev = {q: ('o', n, t, h) for q in vr(y + 4 * h, 4)}
                    st.prio = 30; st.deps.append((r, 3))
                    ops += [r, st]
    if M:
        for l in (1, 2):
            T = ACC[1]
            if l == 1:
                ch = [valu(f"v_mov_b32 v{T}, 0", vr(T), []), valu(f"v_mov_b32 v{T+1}, 0x3f80", vr(T + 1), [], nb=8)]
                ws = [Op(f"ds_write_b64 v{L16}, v[{T}:{T+1}] offset:{HB + 6144 + 7168*n}", 'dsw64', rd=vr(L16) + vr(T, 2)) for n in range(2)]
            else:
                ch = [valu(f"v_mov_b32 v{T}, 0", vr(T), []), valu(f"v_mov_b32 v{T+1}, 0", vr(T + 1), []), valu(f"v_mov_b32 v{T+2}, 0x3f80", vr(T + 2), [], nb=8)]
                ws = [Op(f"ds_write_b96 v{L16}, v[{T}:{T+2}] offset:{HB + 6144 + 7168*n}", 'dsw64', rd=vr(L16) + vr(T, 3), cost=4) for n in range(2)]
            chain(ch + ws, [(bars[f'X0{l-1}'], 0)], prio=35)
            b = bars[f'X1{l-1}']; b.needs += ws; b.deps += [(w, 2) for w in ws]
            ops += ch + ws
    def cap(g):
        if g == -1: return 10
        if g == gB0 or g == NG - 1: return 10000
        if M: return C['capM']
        return C['capR32'] if mf[g].kind == 'mfma32' else C['capR16']
    stamps = None
    if C['stamps'] is not None:
        stamps = {}
        for i, key in enumerate(C['stamps']):
            stamps[start[tuple(key)]] = f"s_memtime s[{STAMP0+6+2*i}:{STAMP0+7+2*i}]"
    times, stats, tend = schedule(em, mf, ops, cap, bartime=bartime, t0=C['tA'], stamps=stamps)
    if C['stamps'] is not None:
        ns = 3 + len(C['stamps'])
        em.raw(f"s_memtime s[{STAMP0+2*ns}:{STAMP0+2*ns+1}]"); ns += 1
        em.raw("s_waitcnt vmcnt(0)")
        em.raw(f"s_memtime s[{STAMP0+2*ns}:{STAMP0+2*ns+1}]"); ns += 1
        assert STAMP0 + 2 * ns <= 98
        em.raw("s_memrealtime s[100:101]"); ns = 12
        em.raw("s_waitcnt lgkmcnt(0)")
        em.raw(f"s_mov_b32 s16, s14\ns_mov_b32 s17, s15\ns_mov_b32 s18, 65536\ns_mov_b32 s19, 0x20000")
        em.raw(f"s_lshl_b32 s20, s2, 2\ns_add_u32 s20, s20, s{sW}\ns_lshl_b32 s20, s20, 6\nv_mov_b32 v1, s20\ns_mov_b64 exec, 1")
        for i in range(ns):
            em.raw(f"v_mov_b32 v0, s{STAMP0+2*i}\ns_nop 1\nbuffer_store_dword v0, v1, s[16:19], 0 offen offset:{4*i}\ns_nop 1")
    em.raw("s_endpgm")
    return times, stats, tend, start

def gen(**kw):
    C = dict(DEF); C.update(kw)
    em, a, hc = common_prologue(C)
    ncom = len(em.out)
    emM = copy.deepcopy(em); emR = copy.deepcopy(em)
    tM, stM, eM, startM = build('M', emM, a, hc, C)
    tR, stR, eR, startR = build('R', emR, a, hc, C, bartime={k: v[1] for k, v in tM.items()})
    if C['verbose']:
        print("M barriers", tM, "end", eM, "waits", emM.nwait, "nops", emM.nnop, "bytes", sum(x[3] for x in emM.out))
        print("R barriers", tR, "end", eR, "waits", emR.nwait, "nops", emR.nnop, "bytes", sum(x[3] for x in emR.out))
        print("M fill", " ".join(str(s[3]) for s in stM))
        print("R fill", " ".join(str(s[3]) for s in stR))
        print("M phase t", {k: stM[v][4] for k, v in startM.items()})
        print("R phase t", {k: stR[v][4] for k, v in startR.items()})
    L = ["; DCN-v2 cross network, generated by gen/fast.py",
         "; @launch grid=(256,1,1) block=(256,1,1) lds=163840",
         '.amdgcn_target "amdgcn-amd-amdhsa--gfx950"', ".text", f".globl {NAME}_kernel", ".p2align 8",
         f".type {NAME}_kernel,@function", f"{NAME}_kernel:"]
    def dump(out):
        g = None
        for (t, gap, c, nb) in out:
            if gap != g and C['verbose']: L.append(f"; gap {gap}"); g = gap
            L.append(t)
    dump(emM.out)
    L.append("L_R:")
    dump(emR.out[ncom:])
    L.append("L_end:\ns_endpgm")
    L.append(f'.section .rodata,"a"\n.p2align 6\n.amdhsa_kernel {NAME}_kernel\n  .amdhsa_next_free_vgpr 512\n  .amdhsa_next_free_sgpr 102\n  .amdhsa_accum_offset 256\n  .amdhsa_group_segment_fixed_size 0\n  .amdhsa_kernarg_size 56\n  .amdhsa_user_sgpr_count 2\n  .amdhsa_user_sgpr_kernarg_segment_ptr 1\n  .amdhsa_system_sgpr_workgroup_id_x 1\n.end_amdhsa_kernel')
    return "\n".join(L) + "\n"

if __name__ == "__main__":
    kw = json.loads(sys.argv[2]) if len(sys.argv) > 2 else {}
    s = gen(verbose=True, **kw)
    open(sys.argv[1] if len(sys.argv) > 1 else "fast.s", "w").write(s)
```

```python
import sys, json
from sched import *
from fast import Pro, valu, salu, srd, NAME
L6B = 53248; VB = 65536; U4 = 90112; V12B = 139264; BIASB = 152576
Yr = lambda p, t: 8 * p + 4 * t
XE_ = lambda p: 104 + 8 * p
XO_ = lambda p: 108 + 8 * p
HA = lambda i: 208 + 4 * i
XF = [236, 240]; TM = [244, 246]
UR, UR8, VR0, VR1, T6R, L16, VD, SO = range(248, 256)
XD, XA0, XAE, XAO, PA, PF1, PF2 = 8, 9, 10, 11, 12, 16, 17
PA = 243
sW = 3; sX = 16; sO = 20; sV = 24; sU = 28; sU4 = 32; sB = 36; sP = 40
sVS = [44, 45, 46]; sW1k = 47; sWV = 48; sWp = 49; sW1664 = 50; sL6a = 51; sL6b = 52; sT = 53; sMask = 54; sLo = 56; sT0 = 58; sT1 = 59
STAMP0 = 78
DEF = dict(stamps=None, D=16, D0=8, NA=18, slack=7, sp=3, sp0=1, npro=12, lag=2, xaux="", saux="sc0 sc1", waux="", pf=True,
           bar0=14, bar0off=0, baroff=0, barper=30, vcap=2, mdist=3, u4est=4, verbose=False, pf2at=10, last_bar=20)

class Piece:
    def __init__(s, name, region, pre, op, private=False):
        s.name = name; s.region = region; s.pre = pre; s.ops = op if isinstance(op, list) else [op]; s.private = private
        s.readers = []; s.need = INF; s.est = -INF; s.issued = None; s.war = []
def dma(voff, s, soff, off, aux=""):
    so = "0" if soff is None else soff
    return Op(f"buffer_load_dwordx4 v{voff}, s[{s}:{s+3}], {so} offen" + (f" offset:{off}" if off else "") + (f" {aux}" if aux else "") + " lds",
              'dma', rd=[f"v{voff}", 'm0'] + srd(s) + ([] if soff is None else [soff]))
def m0(base, imm):
    assert imm >= 0
    if imm == 0: return salu(f"s_mov_b32 m0, s{base}", wr=['m0'], rd=[f"s{base}"])
    return salu(f"s_add_u32 m0, s{base}, {imm}", wr=['m0'], rd=[f"s{base}"], nb=8)
def dsr(p, d, n, addr, off, wv, pieces):
    mn = {4: 'ds_read_b128', 2: 'ds_read_b64'}[n]
    assert 0 <= off < 65536
    o = Op(f"{mn} {p}[{d}:{d+n-1}], v{addr} offset:{off}", 'dsr', rd=[f"v{addr}"], wr=[f"{p}{d+i}" for i in range(n)])
    o.wv = wv; o.pieces = pieces
    for q in pieces: q.readers.append(o)
    return o

def gen(**kw):
    C = dict(DEF); C.update(kw)
    NA = C['NA']; REM = lambda p: 4 * NA + 6 * p; HB = lambda s: 4 * NA + 78 + 4 * s; BG = lambda l: 4 * NA + 90 + 6 * l
    assert BG(3) <= 256
    em = Emitter(lg_slack=C['slack']); P = Pro(em); W = C['waux']
    st = C['stamps'] is not None
    xslot = lambda c: 2 * c if c <= 6 else 2 * (c - 7) + 1
    xp = {c: Piece(('x', c), [(4096 * xslot(c), 4096 * xslot(c) + 4096)], [m0(sW1k, 4096 * xslot(c) - 128 * c)], dma(XD, sX, None, 128 * c, C['xaux']), True) for c in range(13)}
    up = {}
    for k in range(64):
        if k < 52:
            a = 4096 * (k % 13); pre = []
            if k % 13 == 0 and k:
                pre = [salu(f"s_add_u32 s{sU}, s{sU}, 53248\ns_addc_u32 s{sU+1}, s{sU+1}, 0", wr=[f"s{sU}", f"s{sU+1}"], nb=12)]
                pre[0].cost = 2; pre[0].wv = k // 13
            up[k] = Piece(('u', k), [(a, a + 4096)], pre + [m0(sW1k, a)], dma(L16, sU, 'm0', 0, W))
            up[k].ops[0].ev = {f"s{sU}": k // 13 or None}
        else:
            a = U4 + 4096 * (k - 52)
            up[k] = Piece(('u', k), [(a, a + 4096)], [m0(sW1k, a)], dma(L16, sU4, 'm0', 0, W))
    vp = {}; l6 = {}; v12 = {}
    for l in range(3):
        for a in range(6):
            sl = VB + 12288 * ((6 * l + a) % 4)
            for s in range(3):
                pre = [salu(f"s_mov_b32 s{sVS[s]}, {86528*l + 26624*s}", wr=[f"s{sVS[s]}"], nb=8)] if (a == 0 and l > 0) else []
                vp[(l, a, s)] = Piece(('v', l, a, s), [(sl + 2048 * s, sl + 2048 * s + 2048), (sl + 6144 + 2048 * s, sl + 6144 + 2048 * s + 2048)],
                                      pre + [m0(sWV, sl + 2048 * s - 128 * a)], dma(VD, sV, f"s{sVS[s]}", 128 * a, W))
                if pre: pre[0].wv = l
                vp[(l, a, s)].ops[0].ev = {f"s{sVS[s]}": l or None}
        b = L6B + 6144 * (l % 2)
        adv = lambda r: [salu(f"s_add_u32 s{r}, s{r}, 86528", wr=[f"s{r}"], nb=8)] if l else []
        l6[(l, 0)] = Piece(('l6', l, 0), [(b, b + 4096)], adv(sL6a) + [m0(sW1k, b)], dma(VD, sV, f"s{sL6a}", 0, W))
        l6[(l, 1)] = Piece(('l6', l, 1), [(b + 4096, b + 6144)], adv(sL6b) + [m0(sWp, b + 4096)], dma(VD, sV, f"s{sL6b}", 0, W))
        b = V12B + 6656 * (l % 2)
        v12[l] = Piece(('v12', l), [(b, b + 6656)], adv(sT) + [m0(sW1664, b)], [dma(L16, sV, f"s{sT}", 0, W), dma(L16, sV, f"s{sT}", 640, W)])
    bp = Piece(('b',), [(BIASB, BIASB + 4096)], [m0(sW1k, BIASB)], dma(L16, sB, f"s{sW1k}", 0, W))
    seq = [('G1', 0, p) for p in range(13)]
    lag = C['lag']
    for l in range(3):
        seq.append(('G2', l, (0, 1)))
        done = 0
        for p in range(1, 13):
            if p > 1: seq.append(('G2', l, (p,)))
            if l < 2 and p - lag >= 0: seq.append(('G1', l + 1, p - lag)); done = p - lag + 1
        if l < 2: seq += [('G1', l + 1, p) for p in range(done, 13)]
    mf = []; rd = []; g1 = {}; g2 = {}; start = {}; ring = [0]
    def rslot():
        r = 4 * (ring[0] % NA); ring[0] += 1; return r
    def mfma(d, a, bp_, b, c, wv, ev):
        cs = c if isinstance(c, str) else rng('v', d, 4)
        cr = [] if isinstance(c, str) else vr(d, 4)
        br = [f"{bp_}{b+i}" for i in range(4)]
        m = Op(f"v_mfma_f32_16x16x32_bf16 {rng('v', d, 4)}, a[{a}:{a+3}], {bp_}[{b}:{b+3}], {cs}", 'mfma16', rd=ar(a, 4) + br + cr, wr=vr(d, 4), srcc=cr)
        m.wv = wv; m.ev = ev; m.g = len(mf); mf.append(m); return m
    for (kd, l, p) in seq:
        start[(kd, l, p if kd == 'G1' else p[0])] = len(mf)
        if kd == 'G1':
            xb = XO_(p) if l == 0 else XF[p % 2]
            for i in range(7):
                a = rslot(); s, t = i >> 1, i & 1
                if i == 6: r = dsr('a', a, 4, T6R, 6656 * (l % 2) + 64 * p, ('V', l, p, i), [v12[l]])
                else:
                    c, h = (p >> 1, p & 1) if t == 0 else (6 + ((p + 1) >> 1), (p + 1) & 1)
                    if c == 6: base = L6B + 6144 * (l % 2); pc = l6[(l, s >> 1)]
                    else:
                        aa = c if c < 6 else c - 7
                        base = VB + 12288 * ((6 * l + aa) % 4) + (6144 if c > 6 else 0); pc = vp[(l, aa, s)]
                    r = dsr('a', a, 4, VR1 if h else VR0, base + 2048 * s - L6B, ('V', l, p, i), [pc])
                ev = {q: ('V', l, p, i) for q in ar(a, 4)}; ev.update({q: ('x', l, p) for q in vr(xb, 4)})
                if p: ev.update({q: ('h', l, i, p) for q in vr(HA(i), 4)})
                g1[(l, p, i)] = mfma(HA(i), a, 'v', xb, None if p else "0", ('h', l, i, p + 1), ev); rd.append(r)
        else:
            for s in range(4):
                for b in p:
                    B = 13 * l + b; lo = 6656 * B
                    pcs = [up[k] for k in range(lo // 4096, (lo + 6655) // 4096 + 1)]
                    far = B >= 32
                    off = lo - 212992 if far else lo % 53248
                    for t in range(2):
                        first = l == 0 and s == 0
                        if s < 3:
                            a = rslot(); r = dsr('a', a, 4, VR0 if far else UR, off + 208 * t + 64 * s, ('U', l, b, t, s), pcs)
                            ev = {q: ('U', l, b, t, s) for q in ar(a, 4)}; hb = HB(s); ev.update({q: ('hb', l, s) for q in ar(hb, 4)})
                        else:
                            r = dsr('a', REM(b) + 4 * t, 2, VR1 if far else UR8, off + 208 * t, ('U', l, b, t, s), pcs)
                            a = REM(b) + 2 * t; hb = BG(l) + 2 - 2 * t
                            ev = {q: ('U', l, b, t, s) for q in ar(REM(b) + 4 * t, 2)}; ev.update({q: ('P', b) for q in ar(REM(b) + 2, 2)})
                            ev.update({q: ('hb', l, 3) for q in ar(BG(l) + 2, 2)})
                        r.far = far
                        if not first: ev.update({q: ('y', b, t, 4 * l + s) for q in vr(Yr(b, t), 4)})
                        g2[(l, b, t, s)] = mfma(Yr(b, t), a, 'a', hb, "1.0" if first else None, ('y', b, t, 4 * l + s + 1), ev); rd.append(r)
    NG = len(mf)
    G20 = start[('G2', 0, 0)]
    def Dist(i): return C['D0'] if i < G20 + 16 else min(C['D'], C['D0'] + (i - G20 - 16) // 4)
    rgap = [[] for _ in range(NG + 1)]
    for i, r in enumerate(rd):
        if i < G20 and i % 7 == 0:
            p = i // 7
            ad, off = (XA0, 0) if p == 0 else ((XAE, 4096 * (p - 1)) if p % 2 == 0 else (XAO, 4096 * (p - 1)))
            x = dsr('v', XO_(p), 4, ad, off, ('x', 0, p), [xp[p >> 1], xp[6 + ((p + 1) >> 1)]])
            x.pg = max(-1, i - Dist(i) - 1); rgap[x.pg + 1].append(x)
        r.pg = max(-1, i - Dist(i)); rgap[r.pg + 1].append(r)
    for p in range(13):
        o = Op(f"ds_read2_b32 a[{REM(p)+2}:{REM(p)+3}], v{PA} offset0:{16*p} offset1:{16*p}", 'dsr', rd=vr(PA), wr=ar(REM(p) + 2, 2))
        o.wv = ('P', p); o.pieces = [bp]; bp.readers.append(o); o.pg = G20 - 40 + 3 * p; rgap[o.pg + 1].append(o)
    pieces = list(xp.values()) + list(up.values()) + list(vp.values()) + list(l6.values()) + list(v12.values()) + [bp]
    for q in pieces: q.need = min((r.pg + 0.001 * (rgap[r.pg + 1].index(r))) for r in q.readers)
    pieces.sort(key=lambda q: q.need)
    ov = lambda a, b: any(x0 < y1 and y0 < x1 for (x0, x1) in a.region for (y0, y1) in b.region)
    for i, q in enumerate(pieces): q.war = [o for o in pieces[:i] if ov(o, q)]
    for k in range(52, 64): up[k].est = start[('G1', 2, C['u4est'])]
    bars = set()
    g = C['bar0off'] + C['bar0'] - C['D0'] - 1
    while g < G20 + C['baroff'] - 8: bars.add(g); g += C['bar0']
    for l in range(2):
        g0 = start[('G2', l, 0)] + C['baroff']; n = round(195 / C['barper'])
        for i in range(n): bars.add(g0 + round(i * 195 / n))
    bars.add(start[('G2', 2, 0)] + C['baroff'])
    if C['last_bar'] is not None: bars.add(start[('G2', 2, 0)] + C['baroff'] + C['last_bar'])
    barl = sorted(bars)
    def bar_needs(g):
        nx = min([b for b in barl if b > g] + [NG])
        return [q for q in pieces if not q.private and g <= q.need < nx]
    vq = []
    md = C['mdist']
    def V(op, e, d): op.e = e; op.d = d; vq.append(op)
    def unpack(p):
        for j in range(4):
            e = g1[(0, p, 6)].g + 1; d = G20 + 10 + 8 * p
            V(valu(f"v_lshlrev_b32 v{XE_(p)+j}, 16, v{XO_(p)+j}", vr(XE_(p) + j), vr(XO_(p) + j), wv=('x0', p), ev={f"v{XO_(p)+j}": ('x', 0, p)}), e, d)
            V(valu(f"v_and_b32 v{XO_(p)+j}, s{sMask}, v{XO_(p)+j}", vr(XO_(p) + j), vr(XO_(p) + j), wv=('x0', p), ev={f"v{XO_(p)+j}": ('x', 0, p)}), e, d)
    def hproc(l):
        for s in range(3):
            e = g1[(l, 12, 2 * s + 1)].g + md; d = g2[(l, 0, 0, s)].g - 2
            for j in range(4):
                a, b = HA(2 * s) + j, HA(2 * s + 1) + j
                V(valu(f"v_cvt_pk_bf16_f32 v{a}, v{a}, v{b}", vr(a), vr(a) + vr(b), nb=8, wv=('hc',), ev={f"v{a}": ('h', l, 2 * s, 13), f"v{b}": ('h', l, 2 * s + 1, 13)}), e, d)
            for j in range(4):
                a = HA(2 * s) + j
                V(valu(f"v_accvgpr_write_b32 a{HB(s)+j}, v{a}", ar(HB(s) + j), vr(a), nb=8, wv=('hb', l, s), ev={f"v{a}": ('hc',)}), e, d)
        e = g1[(l, 12, 6)].g + md; d = g2[(l, 0, 0, 3)].g - 2; a = HA(6)
        for j in range(2): V(valu(f"v_cvt_pk_bf16_f32 v{a+2*j}, v{a+2*j}, v{a+2*j+1}", vr(a + 2 * j), vr(a + 2 * j, 2), nb=8, wv=('hc',), ev={q: ('h', l, 6, 13) for q in vr(a + 2 * j, 2)}), e, d)
        for j in range(2): V(valu(f"v_cndmask_b32_e64 v{a+2*j}, 0, v{a+2*j}, s[{sLo}:{sLo+1}]", vr(a + 2 * j), vr(a + 2 * j), nb=8, wv=('hc',)), e, d)
        for j in range(2): V(valu(f"v_accvgpr_write_b32 a{BG(l)+2+j}, v{a+2*j}", ar(BG(l) + 2 + j), vr(a + 2 * j), nb=8, wv=('hb', l, 3)), e, d)
    stores = []
    def xproc(l, p):
        e = g2[(l, p, 1, 3)].g + md
        if l < 2:
            xb = XF[p % 2]; d = g1[(l + 1, p, 0)].g - 2
            e2 = max(e, g1[(l + 1, p - 2, 6)].g + 1 if p >= 2 else e)
        else: xb = HA(p % 7); d = min(NG - 1, e + 10); e2 = e
        for j in range(4):
            t = TM[j % 2]
            V(valu(f"v_mul_f32 v{t}, v{XE_(p)+j}, v{Yr(p,0)+j}", vr(t), vr(XE_(p) + j) + vr(Yr(p, 0) + j), wv=('t0', l, p, j), ev={f"v{XE_(p)+j}": ('x0', p), f"v{Yr(p,0)+j}": ('y', p, 0, 4 * l + 4)}), e, d)
            V(valu(f"v_mul_f32 v{t+1}, v{XO_(p)+j}, v{Yr(p,1)+j}", vr(t + 1), vr(XO_(p) + j) + vr(Yr(p, 1) + j), wv=('t1', l, p, j), ev={f"v{XO_(p)+j}": ('x0', p), f"v{Yr(p,1)+j}": ('y', p, 1, 4 * l + 4)}), e, d)
            V(valu(f"v_cvt_pk_bf16_f32 v{xb+j}, v{t}, v{t+1}", vr(xb + j), vr(t, 2), nb=8, wv=('x', l + 1, p), ev={f"v{t}": ('t0', l, p, j), f"v{t+1}": ('t1', l, p, j)}), e2, d)
        if l == 2:
            s_ = Op(f"buffer_store_dwordx4 v[{xb}:{xb+3}], v{SO}, s[{sO}:{sO+3}], 0 offen offset:{64*p}" + (f" {C['saux']}" if C['saux'] else ""), 'st', rd=vr(xb, 4) + vr(SO) + srd(sO))
            s_.ev = {q: ('x', 3, p) for q in vr(xb, 4)}; s_.after = vq[-1]; stores.append(s_)
    for p in range(12): unpack(p)
    hproc(0); unpack(12)
    for l in range(3):
        for p in range(13): xproc(l, p)
        if l < 2: hproc(l + 1)
        if l == 1:
            e = rd[g1[(2, 12, 5)].g].pg + 1; d = rd[g2[(2, 6, 0, 0)].g].pg - 1
            V(valu(f"v_add_u32 v{VR0}, {U4}, v{UR}", vr(VR0), vr(UR), nb=8, wv='far'), e, d)
            V(valu(f"v_add_u32 v{VR1}, {U4}, v{UR8}", vr(VR1), vr(UR8), nb=8, wv='far'), e, d)
    for r in rd:
        if getattr(r, 'far', False): r.ev = {r.rd[0]: 'far'}
        elif r.rd[0] in vr(VR0, 2): r.ev = {r.rd[0]: None}
    for i in range(1, len(vq)): vq[i].e = max(vq[i].e, vq[i - 1].e)
    nxt = INF; cnt = 0
    for o in reversed(vq):
        d = min(o.d, nxt)
        if d == nxt:
            cnt += 1
            if cnt > C['vcap'] and d > o.e: d -= 1; cnt = 1
        else: cnt = 1
        o.late = d; nxt = d
        assert o.late >= o.e or o.e >= NG - 1, (o.text, o.e, o.late)
    if st: em.raw(f"s_memtime s[{STAMP0}:{STAMP0+1}]"); em.raw("s_memrealtime s[98:99]")
    em.raw("s_load_dwordx4 s[4:7], s[0:1], 0"); em.raw("s_load_dwordx4 s[8:11], s[0:1], 16")
    P(f"""s_cmp_ge_u32 s2, 256
s_cbranch_scc1 L_end
v_lshrrev_b32 v2, 6, v0
v_and_b32 v1, 63, v0
v_readfirstlane_b32 s{sW}, v2
v_lshrrev_b32 v3, 3, v1
v_lshrrev_b32 v4, 5, v1
v_and_b32 v5, 16, v1
v_lshlrev_b32 v{L16}, 4, v1
v_lshlrev_b32 v5, 2, v5
v_lshl_or_b32 v5, v4, 5, v5
v_and_b32 v6, 112, v{L16}
v_xor_b32 v5, v5, v6
v_mul_u32_u24 v3, 1664, v3
v_add_u32 v{XD}, v3, v5
v_mul_u32_u24 v4, 6656, v4
s_and_b32 s{sT0}, s{sW}, 1
s_lshr_b32 s{sT1}, s{sW}, 1
s_lshl_b32 s{sW1k}, s{sW}, 10
s_lshl_b32 s{sWp}, s{sT0}, 10
s_mul_i32 s{sWV}, s{sT1}, 6144
s_add_u32 s{sWV}, s{sWV}, s{sWp}
s_mul_i32 s{sL6a}, s{sT1}, {26624-896}
s_add_u32 s{sL6a}, s{sL6a}, 768
s_mul_i32 s{sL6b}, s{sT1}, 896
s_mul_i32 s{sT}, s{sT0}, 6656
s_add_u32 s{sT}, s{sT}, s{sL6b}
s_sub_u32 s{sL6b}, {53248+768}, s{sL6b}
v_add3_u32 v{VD}, v{XD}, v4, s{sT}
s_mul_i32 s{sW1664}, s{sW}, 1664
s_add_u32 s{sT}, s{sW1664}, 79872
s_mov_b32 s{sVS[0]}, 0
s_mov_b32 s{sVS[1]}, 26624
s_mov_b32 s{sVS[2]}, 53248
s_lshr_b32 s14, s2, 3
s_lshl_b32 s14, s14, 7
s_mul_i32 s15, s{sT1}, {11*4096}
s_add_u32 s15, s15, s14
v_lshlrev_b32 v{PF2}, 12, v1
v_add_u32 v{PF1}, s15, v{PF2}
s_lshl_b32 s15, s2, 2
s_add_u32 s15, s15, s{sW}
s_mul_i32 s15, s15, 13312
s_mov_b32 s{sX+2}, 13312
s_mov_b32 s{sX+3}, 0x20000
s_mov_b32 s{sV+2}, 259584
s_mov_b32 s{sV+3}, 0x20000
s_mov_b32 s{sP+2}, 259584
s_mov_b32 s{sP+3}, 0x20000
s_cmp_eq_u32 s{sT0}, 1""")
    em.raw("s_waitcnt lgkmcnt(0)")
    if st: em.raw(f"s_memtime s[{STAMP0+2}:{STAMP0+3}]")
    P(f"""s_cselect_b32 s{sP}, s6, s8
s_cselect_b32 s{sP+1}, s7, s9
s_add_u32 s{sX}, s4, s15
s_addc_u32 s{sX+1}, s5, 0
s_mov_b32 s{sV}, s8
s_mov_b32 s{sV+1}, s9""")
    if C['pf']:
        P("s_mov_b64 exec, 0x7ff")
        em.emit(Op(f"buffer_load_dword v18, v{PF1}, s[{sP}:{sP+3}], 0 offen", 'vld', rd=vr(PF1) + srd(sP), wr=['v18']))
        P("s_mov_b64 exec, -1")
    todo = list(pieces)
    def issue_now(q):
        for o in q.pre + q.ops: em.emit(o)
        q.issued = em.gap; todo.remove(q)
    k = 0
    while k < C['npro']:
        q = [x for x in todo if x is not bp][0]; issue_now(q); k += len(q.ops)
    em.raw("s_load_dwordx2 s[12:13], s[0:1], 32")
    if st: em.raw("s_load_dwordx2 s[60:61], s[0:1], 48")
    P(f"""s_mov_b32 s{sU}, s6
s_mov_b32 s{sU+1}, s7
s_mov_b32 s{sU+2}, 53248
s_mov_b32 s{sU+3}, 0x20000
s_add_u32 s{sU4}, s6, {212992-U4}
s_addc_u32 s{sU4+1}, s7, 0
s_mov_b32 s{sU4+2}, {259584-212992+U4}
s_mov_b32 s{sU4+3}, 0x20000
s_mov_b32 s{sB}, s10
s_mov_b32 s{sB+1}, s11
s_mov_b32 s{sB+2}, 2496
s_mov_b32 s{sB+3}, 0x20000
s_mov_b32 s{sO+2}, 13312
s_mov_b32 s{sO+3}, 0x20000
s_mov_b32 s{sMask}, 0xffff0000
s_mov_b32 s{sLo}, -1
s_mov_b32 s{sLo+1}, 0
s_mul_i32 s{sT1}, s{sT1}, {21*4096}
s_add_u32 s14, s14, s{sT1}
s_add_u32 s14, s14, {22*4096}
v_add_u32 v{PF2}, s14, v{PF2}
v_and_b32 v2, 15, v1
v_lshrrev_b32 v3, 4, v1
v_lshlrev_b32 v6, 4, v3
v_mul_u32_u24 v7, 416, v2
v_add_u32 v{UR}, v7, v6
v_and_b32 v13, 1, v3
v_lshl_add_u32 v7, v13, 3, v7
v_add_u32 v{UR8}, 192, v7
v_mul_u32_u24 v7, 832, v2
v_add_u32 v{SO}, v7, v6
v_xor_b32 v13, 32, v6
v_cmp_gt_u32 vcc, 8, v2
v_cndmask_b32 v13, v13, v{SO}, vcc
v_add_u32 v{T6R}, {V12B}, v13
v_mul_u32_u24 v7, 832, v3
v_lshl_add_u32 v7, v2, 2, v7
v_add_u32 v{PA}, {BIASB}, v7
v_lshrrev_b32 v4, 3, v2
v_and_b32 v5, 3, v2
v_lshl_add_u32 v7, v4, 2, v5
v_lshlrev_b32 v7, 7, v7
v_and_b32 v13, 4, v2
v_lshl_add_u32 v7, v13, 8, v7
v_and_b32 v13, 2, v2
v_lshlrev_b32 v13, 5, v13
v_lshl_or_b32 v13, v4, 5, v13
v_xor_b32 v13, v13, v6
v_add_u32 v13, {L6B}, v13
v_add_u32 v{VR0}, v7, v13
v_xor_b32 v{VR1}, 64, v{VR0}
v_lshrrev_b32 v7, 1, v2
v_lshl_add_u32 v7, v7, 7, s{sW1k}
v_and_b32 v5, 1, v2
v_and_b32 v13, 4, v2
v_lshlrev_b32 v13, 4, v13
v_lshl_or_b32 v13, v4, 5, v13
v_xor_b32 v13, v13, v6
v_lshlrev_b32 v14, 6, v5
v_xor_b32 v13, v13, v14
v_add_u32 v7, v7, v13
v_mul_u32_u24 v14, 49152, v5
v_add_u32 v{XA0}, v7, v14
v_lshlrev_b32 v14, 12, v5
v_sub_u32 v{XAE}, v7, v14
v_add_u32 v{XAE}, 4096, v{XAE}
v_xor_b32 v7, 64, v7
v_add_u32 v{XAO}, v7, v14
v_mov_b32 v7, 0x3f80""")
    for l in range(3):
        P(f"""v_cmp_eq_u32 vcc, {l}, v3
v_cndmask_b32 v13, 0, v7, vcc
v_accvgpr_write_b32 a{BG(l)+1}, 0
v_accvgpr_write_b32 a{BG(l)+4}, v13
v_lshlrev_b32 v13, 16, v13
v_accvgpr_write_b32 a{BG(l)+5}, 0
v_accvgpr_write_b32 a{BG(l)}, v13""")
    em.raw("s_waitcnt lgkmcnt(0)")
    P(f"s_add_u32 s{sO}, s12, s15\ns_addc_u32 s{sO+1}, s13, 0")
    freed = 0; slack = []
    def barop(g):
        nd = bar_needs(g)
        for q in nd: assert q.issued is not None, f"piece {q.name} not issued at barrier {g} (need {q.need})"
        return Op("s_barrier", 'bar', needs=[q.ops[-1] for q in nd], cost=2), nd
    def elig(q, g):
        if q.est > g: return False
        for o in q.war:
            for r in o.readers:
                if r.seq is None or r.seq >= (em.lg_done if o.private else freed): return False
        return True
    stamps = {}
    if st:
        for i, key in enumerate(C['stamps']): stamps[start[tuple(key)]] = f"s_memtime s[{STAMP0+6+2*i}:{STAMP0+7+2*i}]"
    cur = None; curq = []; lastd = -INF; vi = 0; fill = []; T = 0; tl = {}
    for g in range(-1, NG):
        em.gap = g; o0 = len(em.out); shadow = g >= 0
        if g >= 0:
            if g in stamps: em.raw(stamps[g], nb=8)
            em.emit(mf[g])
        om = len(em.out)
        if g in bars or g == -1:
            b, nd = barop(g)
            em.emit(b); freed = em.lg_done; shadow = False
            slack += [(g - q.issued, q.name) for q in nd if q.issued >= 0]
            if g == -1 and st: em.raw(f"s_memtime s[{STAMP0+4}:{STAMP0+5}]")
        lg, vm = em.need(mf[g + 1]) if 0 <= g < NG - 1 else (0, 0)
        if g + 1 in bars:
            vm = em.need(barop(g + 1)[0])[1]
            if g + 2 < NG: lg = max(lg, em.need(mf[g + 2])[0])
            lg = max(lg, em.lg_done + 1) if em.lg_done < len(em.lg) and em.lg[em.lg_done].gap <= g - em.lg_slack else lg
        if lg or vm: em.wait(lg, vm); shadow = False
        sp = C['sp0'] if g < G20 + 16 else C['sp']
        if cur is None:
            el = [q for q in todo if elig(q, g)]
            if el: cur = el[0]; curq = list(cur.pre) + list(cur.ops); todo.remove(cur)
        if cur and curq[0].kind == 'salu' and (shadow or g < G20): em.emit(curq.pop(0))
        for r in rgap[g + 1]:
            for q in r.pieces:
                if q.private: r.needs.append(q.ops[-1])
            em.emit(r)
        nf = len(rgap[g + 1]) + (2 if g in bars else 0)
        if g == C['pf2at'] and C['pf']:
            P("s_mov_b64 exec, 0x1fffff")
            em.emit(Op(f"buffer_load_dword v18, v{PF2}, s[{sP}:{sP+3}], 0 offen", 'vld', rd=vr(PF2) + srd(sP), wr=['v18']))
            P("s_mov_b64 exec, -1")
        if cur and curq[0].kind == 'dma' and g - lastd >= sp:
            em.emit(curq.pop(0)); lastd = g; nf += 2
            if not curq: cur.issued = g; cur = None
        elif stores and stores[0].after.gap is not None:
            em.emit(stores.pop(0)); nf += 4
        while vi < len(vq) and (g == NG - 1 or (vq[vi].e <= g and (nf < 2 or vq[vi].late <= g or (g < G20 and nf < 3)))):
            em.emit(vq[vi]); vi += 1; nf += 1
            if g == NG - 1 and stores and stores[0].after.gap is not None: em.emit(stores.pop(0))
        c = sum(x[2] for x in em.out[o0:]) - (1 if g >= 0 and len(em.out) > om and em.out[om][0].startswith('s_') and not em.out[om][0].startswith('s_barrier') else 0)
        fill.append(c); tl[g] = T; T += max(4, c)
    assert not todo and cur is None and not stores and vi == len(vq)
    if st:
        ns = 3 + len(C['stamps'])
        em.raw(f"s_memtime s[{STAMP0+2*ns}:{STAMP0+2*ns+1}]"); ns += 1
        em.raw("s_waitcnt vmcnt(0)")
        em.raw(f"s_memtime s[{STAMP0+2*ns}:{STAMP0+2*ns+1}]"); ns += 1
        assert STAMP0 + 2 * ns <= 98
        em.raw("s_memrealtime s[100:101]")
        em.raw("s_waitcnt lgkmcnt(0)")
        em.raw(f"s_mov_b32 s16, s60\ns_mov_b32 s17, s61\ns_mov_b32 s18, 65536\ns_mov_b32 s19, 0x20000")
        em.raw(f"s_lshl_b32 s20, s2, 2\ns_add_u32 s20, s20, s{sW}\ns_lshl_b32 s20, s20, 6\nv_mov_b32 v1, s20\ns_mov_b64 exec, 1")
        for i in range(12): em.raw(f"v_mov_b32 v0, s{STAMP0+2*i}\ns_nop 1\nbuffer_store_dword v0, v1, s[16:19], 0 offen offset:{4*i}\ns_nop 1")
    if C['verbose']:
        print("slots", T, "waits", em.nwait, "nops", em.nnop, "bytes", sum(x[3] for x in em.out), "bars", barl)
        print("phase slots", {k: tl[v] for k, v in start.items() if k[2] == 0 and k[0] == 'G2'})
        print("fill", "".join(str(min(c, 9)) for c in fill))
        print("slack", [(s_, n) for s_, n in slack])
    L = ["; DCN-v2 cross network, generated by gen/v2.py", "; @launch grid=(256,1,1) block=(256,1,1) lds=163840",
         '.amdgcn_target "amdgcn-amd-amdhsa--gfx950"', ".text", f".globl {NAME}_kernel", ".p2align 8", f".type {NAME}_kernel,@function", f"{NAME}_kernel:"]
    L += [t for (t, gap, c, nb) in em.out]
    L.append("L_end:\ns_endpgm")
    L.append(f'.section .rodata,"a"\n.p2align 6\n.amdhsa_kernel {NAME}_kernel\n  .amdhsa_next_free_vgpr 512\n  .amdhsa_next_free_sgpr 102\n  .amdhsa_accum_offset 256\n  .amdhsa_group_segment_fixed_size 0\n  .amdhsa_kernarg_size 56\n  .amdhsa_user_sgpr_count 2\n  .amdhsa_user_sgpr_kernarg_segment_ptr 1\n  .amdhsa_system_sgpr_workgroup_id_x 1\n.end_amdhsa_kernel')
    return "\n".join(L) + "\n"

if __name__ == "__main__":
    kw = json.loads(sys.argv[2]) if len(sys.argv) > 2 else {}
    s = gen(verbose=True, **kw)
    open(sys.argv[1], "w").write(s)
```

```python
import sys, json
from sched import *
from fast import Pro, valu, salu, srd, NAME
L6B = 53248; VB = 65536; U4 = 90112; V12B = 139264; BIASB = 152576
Yr = lambda p, t: 8 * p + 4 * t
XE_ = lambda p: 104 + 8 * p
XO_ = lambda p: 108 + 8 * p
HA = lambda i: 208 + 4 * i
XF = [236, 240]; TM = [244, 246]
UR, UR8, VR0, VR1, T6R, L16, VD, SO = range(248, 256)
XD, XA0, XAE, XAO, PA, PF1, PF2 = 8, 9, 10, 11, 12, 16, 17
PA = 243; VRB = 20
sW = 3; sX = 16; sO = 20; sV = 24; sU = 28; sU4 = 32; sB = 36; sP = 40
sVS = [44, 45, 46]; sW1k = 47; sWV = 48; sWp = 49; sW1664 = 50; sL6a = 51; sL6b = 52; sT = 53; sMask = 54; sLo = 56; sT0 = 58; sT1 = 59
STAMP0 = 78
DEF = dict(stamps=None, D=16, D0=8, NA=18, slack=7, sp=3, sp0=1, npro=12, lag=2, xaux="", saux="sc0 sc1", waux="", pf=True,
           bar0=14, bar0off=0, baroff=0, barper=30, vcap=2, mdist=3, u4est=4, verbose=False, pf2at=10, last_bar=20, vrot=0, xs=1.0, n1=12)

class Piece:
    def __init__(s, name, region, pre, op, private=False):
        s.name = name; s.region = region; s.pre = pre; s.ops = op if isinstance(op, list) else [op]; s.private = private
        s.readers = []; s.need = INF; s.est = -INF; s.issued = None; s.war = []
def dma(voff, s, soff, off, aux=""):
    so = "0" if soff is None else soff
    return Op(f"buffer_load_dwordx4 v{voff}, s[{s}:{s+3}], {so} offen" + (f" offset:{off}" if off else "") + (f" {aux}" if aux else "") + " lds",
              'dma', rd=[f"v{voff}", 'm0'] + srd(s) + ([] if soff is None else [soff]))
def m0(base, imm):
    assert imm >= 0
    if imm == 0: return salu(f"s_mov_b32 m0, s{base}", wr=['m0'], rd=[f"s{base}"])
    return salu(f"s_add_u32 m0, s{base}, {imm}", wr=['m0'], rd=[f"s{base}"], nb=8)
def dsr(p, d, n, addr, off, wv, pieces):
    mn = {4: 'ds_read_b128', 2: 'ds_read_b64'}[n]
    assert 0 <= off < 65536
    o = Op(f"{mn} {p}[{d}:{d+n-1}], v{addr} offset:{off}", 'dsr', rd=[f"v{addr}"], wr=[f"{p}{d+i}" for i in range(n)])
    o.wv = wv; o.pieces = pieces
    for q in pieces: q.readers.append(o)
    return o

def gen(**kw):
    C = dict(DEF); C.update(kw)
    NA = C['NA']; REM = lambda p: 4 * NA + 6 * p; HB = lambda s: 4 * NA + 78 + 4 * s; BG = lambda l: 4 * NA + 90 + 6 * l
    assert BG(3) <= 256
    em = Emitter(lg_slack=C['slack']); P = Pro(em); W = C['waux']
    st = C['stamps'] is not None
    xslot = lambda c: 2 * c if c <= 6 else 2 * (c - 7) + 1
    xp = {c: Piece(('x', c), [(4096 * xslot(c), 4096 * xslot(c) + 4096)], [m0(sW1k, 4096 * xslot(c) - 128 * c)], dma(XD, sX, None, 128 * c, C['xaux']), True) for c in range(13)}
    up = {}
    for k in range(64):
        if k < 52:
            a = 4096 * (k % 13); pre = []
            if k % 13 == 0 and k:
                pre = [salu(f"s_add_u32 s{sU}, s{sU}, 53248\ns_addc_u32 s{sU+1}, s{sU+1}, 0", wr=[f"s{sU}", f"s{sU+1}"], nb=12)]
                pre[0].cost = 2; pre[0].wv = k // 13
            up[k] = Piece(('u', k), [(a, a + 4096)], pre + [m0(sW1k, a)], dma(L16, sU, 'm0', 0, W))
            up[k].ops[0].ev = {f"s{sU}": k // 13 or None}
        else:
            a = U4 + 4096 * (k - 52)
            up[k] = Piece(('u', k), [(a, a + 4096)], [m0(sW1k, a)], dma(L16, sU4, 'm0', 0, W))
    vp = {}; l6 = {}; v12 = {}
    def vsl(l, a):
        if l == 0: return VB + 12288 * (a if a > 3 else (a + 2) % 4)
        return VB + 12288 * ((6 * l + a + C['vrot']) % 4)
    for l in range(3):
        for a in range(6):
            sl = vsl(l, a)
            for s in range(3):
                pre = [salu(f"s_mov_b32 s{sVS[s]}, {86528*l + 26624*s}", wr=[f"s{sVS[s]}"], nb=8)] if (a == 0 and l > 0) else []
                vp[(l, a, s)] = Piece(('v', l, a, s), [(sl + 2048 * s, sl + 2048 * s + 2048), (sl + 6144 + 2048 * s, sl + 6144 + 2048 * s + 2048)],
                                      pre + [m0(sWV, sl + 2048 * s - 128 * a)], dma(VD, sV, f"s{sVS[s]}", 128 * a, W))
                if pre: pre[0].wv = l
                vp[(l, a, s)].ops[0].ev = {f"s{sVS[s]}": l or None}
        b = L6B + 6144 * (l % 2)
        adv = lambda r: [salu(f"s_add_u32 s{r}, s{r}, 86528", wr=[f"s{r}"], nb=8)] if l else []
        l6[(l, 0)] = Piece(('l6', l, 0), [(b, b + 4096)], adv(sL6a) + [m0(sW1k, b)], dma(VD, sV, f"s{sL6a}", 0, W))
        l6[(l, 1)] = Piece(('l6', l, 1), [(b + 4096, b + 6144)], adv(sL6b) + [m0(sWp, b + 4096)], dma(VD, sV, f"s{sL6b}", 0, W))
        b = V12B + 6656 * (l % 2)
        v12[l] = Piece(('v12', l), [(b, b + 6656)], adv(sT) + [m0(sW1664, b)], [dma(L16, sV, f"s{sT}", 0, W), dma(L16, sV, f"s{sT}", 640, W)])
    bp = Piece(('b',), [(BIASB, BIASB + 4096)], [m0(sW1k, BIASB)], dma(L16, sB, f"s{sW1k}", 0, W))
    seq = [('G1', 0, p) for p in range(13)]
    lag = C['lag']
    for l in range(3):
        seq.append(('G2', l, (0, 1)))
        done = 0
        for p in range(1, 13):
            if p > 1: seq.append(('G2', l, (p,)))
            if l < 2 and p - lag >= 0: seq.append(('G1', l + 1, p - lag)); done = p - lag + 1
        if l < 2: seq += [('G1', l + 1, p) for p in range(done, 13)]
    mf = []; rd = []; g1 = {}; g2 = {}; start = {}; ring = [0]
    def rslot():
        r = 4 * (ring[0] % NA); ring[0] += 1; return r
    def mfma(d, a, bp_, b, c, wv, ev):
        cs = c if isinstance(c, str) else rng('v', d, 4)
        cr = [] if isinstance(c, str) else vr(d, 4)
        br = [f"{bp_}{b+i}" for i in range(4)]
        m = Op(f"v_mfma_f32_16x16x32_bf16 {rng('v', d, 4)}, a[{a}:{a+3}], {bp_}[{b}:{b+3}], {cs}", 'mfma16', rd=ar(a, 4) + br + cr, wr=vr(d, 4), srcc=cr)
        m.wv = wv; m.ev = ev; m.g = len(mf); mf.append(m); return m
    for (kd, l, p) in seq:
        start[(kd, l, p if kd == 'G1' else p[0])] = len(mf)
        if kd == 'G1':
            xb = XO_(p) if l == 0 else XF[p % 2]
            for i in range(7):
                a = rslot(); s, t = i >> 1, i & 1
                if i == 6: r = dsr('a', a, 4, T6R, 6656 * (l % 2) + 64 * p, ('V', l, p, i), [v12[l]])
                else:
                    c, h = (p >> 1, p & 1) if t == 0 else (6 + ((p + 1) >> 1), (p + 1) & 1)
                    if c == 6: base = L6B + 6144 * (l % 2); pc = l6[(l, s >> 1)]
                    else:
                        aa = c if c < 6 else c - 7
                        base = vsl(l, aa) + (6144 if c > 6 else 0); pc = vp[(l, aa, s)]
                    if base >= VB + 49152: r = dsr('a', a, 4, VRB + h, base + 2048 * s - L6B - 32768, ('V', l, p, i), [pc])
                    else: r = dsr('a', a, 4, VR1 if h else VR0, base + 2048 * s - L6B, ('V', l, p, i), [pc])
                ev = {q: ('V', l, p, i) for q in ar(a, 4)}; ev.update({q: ('x', l, p) for q in vr(xb, 4)})
                if p: ev.update({q: ('h', l, i, p) for q in vr(HA(i), 4)})
                g1[(l, p, i)] = mfma(HA(i), a, 'v', xb, None if p else "0", ('h', l, i, p + 1), ev); rd.append(r)
        else:
            for s in range(4):
                for b in p:
                    B = 13 * l + b; lo = 6656 * B
                    pcs = [up[k] for k in range(lo // 4096, (lo + 6655) // 4096 + 1)]
                    far = B >= 32
                    off = lo - 212992 if far else lo % 53248
                    for t in range(2):
                        first = l == 0 and s == 0
                        if s < 3:
                            a = rslot(); r = dsr('a', a, 4, VR0 if far else UR, off + 208 * t + 64 * s, ('U', l, b, t, s), pcs)
                            ev = {q: ('U', l, b, t, s) for q in ar(a, 4)}; hb = HB(s); ev.update({q: ('hb', l, s) for q in ar(hb, 4)})
                        else:
                            r = dsr('a', REM(b) + 4 * t, 2, VR1 if far else UR8, off + 208 * t, ('U', l, b, t, s), pcs)
                            a = REM(b) + 2 * t; hb = BG(l) + 2 - 2 * t
                            ev = {q: ('U', l, b, t, s) for q in ar(REM(b) + 4 * t, 2)}; ev.update({q: ('P', b) for q in ar(REM(b) + 2, 2)})
                            ev.update({q: ('hb', l, 3) for q in ar(BG(l) + 2, 2)})
                        r.far = far
                        if not first: ev.update({q: ('y', b, t, 4 * l + s) for q in vr(Yr(b, t), 4)})
                        g2[(l, b, t, s)] = mfma(Yr(b, t), a, 'a', hb, "1.0" if first else None, ('y', b, t, 4 * l + s + 1), ev); rd.append(r)
    NG = len(mf)
    G20 = start[('G2', 0, 0)]
    def Dist(i): return C['D0'] if i < G20 + 16 else min(C['D'], C['D0'] + (i - G20 - 16) // 4)
    rgap = [[] for _ in range(NG + 1)]
    for i, r in enumerate(rd):
        if i < G20 and i % 7 == 0:
            p = i // 7
            ad, off = (XA0, 0) if p == 0 else ((XAE, 4096 * (p - 1)) if p % 2 == 0 else (XAO, 4096 * (p - 1)))
            x = dsr('v', XO_(p), 4, ad, off, ('x', 0, p), [xp[p >> 1], xp[6 + ((p + 1) >> 1)]])
            x.pg = max(-1, i - Dist(i) - 1); rgap[x.pg + 1].append(x)
        r.pg = max(-1, i - Dist(i)); rgap[r.pg + 1].append(r)
    for p in range(13):
        o = Op(f"ds_read2_b32 a[{REM(p)+2}:{REM(p)+3}], v{PA} offset0:{16*p} offset1:{16*p}", 'dsr', rd=vr(PA), wr=ar(REM(p) + 2, 2))
        o.wv = ('P', p); o.pieces = [bp]; bp.readers.append(o); o.pg = G20 - 40 + 3 * p; rgap[o.pg + 1].append(o)
    pieces = list(xp.values()) + list(up.values()) + list(vp.values()) + list(l6.values()) + list(v12.values()) + [bp]
    for q in pieces: q.need = min((r.pg + 0.001 * (rgap[r.pg + 1].index(r))) for r in q.readers)
    pieces.sort(key=lambda q: q.need)
    ov = lambda a, b: any(x0 < y1 and y0 < x1 for (x0, x1) in a.region for (y0, y1) in b.region)
    for i, q in enumerate(pieces): q.war = [o for o in pieces[:i] if ov(o, q)]
    for k in range(52, 64): up[k].est = start[('G1', 2, C['u4est'])]
    bars = set()
    g = C['bar0off'] + C['bar0'] - C['D0'] - 1
    while g < G20 + C['baroff'] - 8: bars.add(g); g += C['bar0']
    for l in range(2):
        g0 = start[('G2', l, 0)] + C['baroff']; n = round(195 / C['barper'])
        for i in range(n): bars.add(g0 + round(i * 195 / n))
    bars.add(start[('G2', 2, 0)] + C['baroff'])
    if C['last_bar'] is not None: bars.add(start[('G2', 2, 0)] + C['baroff'] + C['last_bar'])
    barl = sorted(bars)
    def bar_needs(g):
        nx = min([b for b in barl if b > g] + [NG])
        return [q for q in pieces if not q.private and g <= q.need < nx]
    vq = []
    md = C['mdist']
    def V(op, e, d): op.e = e; op.d = d; vq.append(op)
    def unpack(p):
        for j in range(4):
            e = g1[(0, p, 6)].g + 1; d = G20 + 10 + 8 * p
            V(valu(f"v_lshlrev_b32 v{XE_(p)+j}, 16, v{XO_(p)+j}", vr(XE_(p) + j), vr(XO_(p) + j), wv=('x0', p), ev={f"v{XO_(p)+j}": ('x', 0, p)}), e, d)
            V(valu(f"v_and_b32 v{XO_(p)+j}, s{sMask}, v{XO_(p)+j}", vr(XO_(p) + j), vr(XO_(p) + j), wv=('x0', p), ev={f"v{XO_(p)+j}": ('x', 0, p)}), e, d)
    def hproc(l):
        for s in range(3):
            e = g1[(l, 12, 2 * s + 1)].g + md; d = g2[(l, 0, 0, s)].g - 2
            for j in range(4):
                a, b = HA(2 * s) + j, HA(2 * s + 1) + j
                V(valu(f"v_cvt_pk_bf16_f32 v{a}, v{a}, v{b}", vr(a), vr(a) + vr(b), nb=8, wv=('hc',), ev={f"v{a}": ('h', l, 2 * s, 13), f"v{b}": ('h', l, 2 * s + 1, 13)}), e, d)
            for j in range(4):
                a = HA(2 * s) + j
                V(valu(f"v_accvgpr_write_b32 a{HB(s)+j}, v{a}", ar(HB(s) + j), vr(a), nb=8, wv=('hb', l, s), ev={f"v{a}": ('hc',)}), e, d)
        e = g1[(l, 12, 6)].g + md; d = g2[(l, 0, 0, 3)].g - 2; a = HA(6)
        for j in range(2): V(valu(f"v_cvt_pk_bf16_f32 v{a+2*j}, v{a+2*j}, v{a+2*j+1}", vr(a + 2 * j), vr(a + 2 * j, 2), nb=8, wv=('hc',), ev={q: ('h', l, 6, 13) for q in vr(a + 2 * j, 2)}), e, d)
        for j in range(2): V(valu(f"v_cndmask_b32_e64 v{a+2*j}, 0, v{a+2*j}, s[{sLo}:{sLo+1}]", vr(a + 2 * j), vr(a + 2 * j), nb=8, wv=('hc',)), e, d)
        for j in range(2): V(valu(f"v_accvgpr_write_b32 a{BG(l)+2+j}, v{a+2*j}", ar(BG(l) + 2 + j), vr(a + 2 * j), nb=8, wv=('hb', l, 3)), e, d)
    stores = []
    def xproc(l, p):
        e = g2[(l, p, 1, 3)].g + md
        if l < 2:
            xb = XF[p % 2]; d = g1[(l + 1, p, 0)].g - 2
            e2 = max(e, g1[(l + 1, p - 2, 6)].g + 1 if p >= 2 else e)
        else: xb = HA(p % 7); d = min(NG - 1, e + 10); e2 = e
        for j in range(4):
            t = TM[j % 2]
            V(valu(f"v_mul_f32 v{t}, v{XE_(p)+j}, v{Yr(p,0)+j}", vr(t), vr(XE_(p) + j) + vr(Yr(p, 0) + j), wv=('t0', l, p, j), ev={f"v{XE_(p)+j}": ('x0', p), f"v{Yr(p,0)+j}": ('y', p, 0, 4 * l + 4)}), e, d)
            V(valu(f"v_mul_f32 v{t+1}, v{XO_(p)+j}, v{Yr(p,1)+j}", vr(t + 1), vr(XO_(p) + j) + vr(Yr(p, 1) + j), wv=('t1', l, p, j), ev={f"v{XO_(p)+j}": ('x0', p), f"v{Yr(p,1)+j}": ('y', p, 1, 4 * l + 4)}), e, d)
            V(valu(f"v_cvt_pk_bf16_f32 v{xb+j}, v{t}, v{t+1}", vr(xb + j), vr(t, 2), nb=8, wv=('x', l + 1, p), ev={f"v{t}": ('t0', l, p, j), f"v{t+1}": ('t1', l, p, j)}), e2, d)
        if l == 2:
            s_ = Op(f"buffer_store_dwordx4 v[{xb}:{xb+3}], v{SO}, s[{sO}:{sO+3}], 0 offen offset:{64*p}" + (f" {C['saux']}" if C['saux'] else ""), 'st', rd=vr(xb, 4) + vr(SO) + srd(sO))
            s_.ev = {q: ('x', 3, p) for q in vr(xb, 4)}; s_.after = vq[-1]; stores.append(s_)
    for p in range(12): unpack(p)
    hproc(0); unpack(12)
    for l in range(3):
        for p in range(13): xproc(l, p)
        if l < 2: hproc(l + 1)
        if l == 1:
            e = rd[g1[(2, 12, 5)].g].pg + 1; d = rd[g2[(2, 6, 0, 0)].g].pg - 1
            V(valu(f"v_add_u32 v{VR0}, {U4}, v{UR}", vr(VR0), vr(UR), nb=8, wv='far'), e, d)
            V(valu(f"v_add_u32 v{VR1}, {U4}, v{UR8}", vr(VR1), vr(UR8), nb=8, wv='far'), e, d)
    for r in rd:
        if getattr(r, 'far', False): r.ev = {r.rd[0]: 'far'}
        elif r.rd[0] in vr(VR0, 2): r.ev = {r.rd[0]: None}
    for i in range(1, len(vq)): vq[i].e = max(vq[i].e, vq[i - 1].e)
    nxt = INF; cnt = 0
    for o in reversed(vq):
        d = min(o.d, nxt)
        if d == nxt:
            cnt += 1
            if cnt > C['vcap'] and d > o.e: d -= 1; cnt = 1
        else: cnt = 1
        o.late = d; nxt = d
        assert o.late >= o.e or o.e >= NG - 1, (o.text, o.e, o.late)
    if st: em.raw(f"s_memtime s[{STAMP0}:{STAMP0+1}]"); em.raw("s_memrealtime s[98:99]")
    em.raw("s_load_dwordx4 s[4:7], s[0:1], 0"); em.raw("s_load_dwordx4 s[8:11], s[0:1], 16")
    P(f"""s_cmp_ge_u32 s2, 256
s_cbranch_scc1 L_end
v_lshrrev_b32 v2, 6, v0
v_and_b32 v1, 63, v0
v_readfirstlane_b32 s{sW}, v2
v_lshrrev_b32 v3, 3, v1
v_lshrrev_b32 v4, 5, v1
v_and_b32 v5, 16, v1
v_lshlrev_b32 v{L16}, 4, v1
v_lshlrev_b32 v5, 2, v5
v_lshl_or_b32 v5, v4, 5, v5
v_and_b32 v6, 112, v{L16}
v_xor_b32 v5, v5, v6
v_mul_u32_u24 v3, 1664, v3
v_add_u32 v{XD}, v3, v5
v_mul_u32_u24 v4, 6656, v4
s_and_b32 s{sT0}, s{sW}, 1
s_lshr_b32 s{sT1}, s{sW}, 1
s_lshl_b32 s{sW1k}, s{sW}, 10
s_lshl_b32 s{sWp}, s{sT0}, 10
s_mul_i32 s{sWV}, s{sT1}, 6144
s_add_u32 s{sWV}, s{sWV}, s{sWp}
s_mul_i32 s{sL6a}, s{sT1}, {26624-896}
s_add_u32 s{sL6a}, s{sL6a}, 768
s_mul_i32 s{sL6b}, s{sT1}, 896
s_mul_i32 s{sT}, s{sT0}, 6656
s_add_u32 s{sT}, s{sT}, s{sL6b}
s_sub_u32 s{sL6b}, {53248+768}, s{sL6b}
v_add3_u32 v{VD}, v{XD}, v4, s{sT}
s_mul_i32 s{sW1664}, s{sW}, 1664
s_add_u32 s{sT}, s{sW1664}, 79872
s_mov_b32 s{sVS[0]}, 0
s_mov_b32 s{sVS[1]}, 26624
s_mov_b32 s{sVS[2]}, 53248
s_lshr_b32 s14, s2, 3
s_lshl_b32 s14, s14, 7
s_mul_i32 s15, s{sT1}, {11*4096}
s_add_u32 s15, s15, s14
v_lshlrev_b32 v{PF2}, 12, v1
v_add_u32 v{PF1}, s15, v{PF2}
s_lshl_b32 s15, s2, 2
s_add_u32 s15, s15, s{sW}
s_mul_i32 s15, s15, 13312
s_mov_b32 s{sX+2}, 13312
s_mov_b32 s{sX+3}, 0x20000
s_mov_b32 s{sV+2}, 259584
s_mov_b32 s{sV+3}, 0x20000
s_mov_b32 s{sP+2}, 259584
s_mov_b32 s{sP+3}, 0x20000
s_cmp_eq_u32 s{sT0}, 1""")
    em.raw("s_waitcnt lgkmcnt(0)")
    if st: em.raw(f"s_memtime s[{STAMP0+2}:{STAMP0+3}]")
    P(f"""s_cselect_b32 s{sP}, s6, s8
s_cselect_b32 s{sP+1}, s7, s9
s_add_u32 s{sX}, s4, s15
s_addc_u32 s{sX+1}, s5, 0
s_mov_b32 s{sV}, s8
s_mov_b32 s{sV+1}, s9""")
    if C['pf']:
        P("s_mov_b64 exec, 0x7ff")
        em.emit(Op(f"buffer_load_dword v18, v{PF1}, s[{sP}:{sP+3}], 0 offen", 'vld', rd=vr(PF1) + srd(sP), wr=['v18']))
        P("s_mov_b64 exec, -1")
    todo = sorted(pieces, key=lambda q: (q.need + 1) * C['xs'] - 1.5 if q.private else q.need)
    def pf2():
        if C['pf']:
            P("s_mov_b64 exec, 0x1fffff")
            em.emit(Op(f"buffer_load_dword v18, v{PF2}, s[{sP}:{sP+3}], 0 offen", 'vld', rd=vr(PF2) + srd(sP), wr=['v18']))
            P("s_mov_b64 exec, -1")
    def issue_now(q):
        for o in q.pre + q.ops: em.emit(o)
        q.issued = em.gap; todo.remove(q)
    k = 0
    while k < C['n1']:
        q = [x for x in todo if x is not bp][0]; issue_now(q); k += len(q.ops)
    em.raw("s_load_dwordx2 s[12:13], s[0:1], 32")
    if st: em.raw("s_load_dwordx2 s[60:61], s[0:1], 48")
    P(f"""s_mov_b32 s{sU}, s6
s_mov_b32 s{sU+1}, s7
s_mov_b32 s{sU+2}, 53248
s_mov_b32 s{sU+3}, 0x20000
s_add_u32 s{sU4}, s6, {212992-U4}
s_addc_u32 s{sU4+1}, s7, 0
s_mov_b32 s{sU4+2}, {259584-212992+U4}
s_mov_b32 s{sU4+3}, 0x20000
s_mov_b32 s{sB}, s10
s_mov_b32 s{sB+1}, s11
s_mov_b32 s{sB+2}, 2496
s_mov_b32 s{sB+3}, 0x20000
s_mov_b32 s{sO+2}, 13312
s_mov_b32 s{sO+3}, 0x20000
s_mov_b32 s{sMask}, 0xffff0000
s_mov_b32 s{sLo}, -1
s_mov_b32 s{sLo+1}, 0
s_mul_i32 s{sT1}, s{sT1}, {21*4096}
s_add_u32 s14, s14, s{sT1}
s_add_u32 s14, s14, {22*4096}
v_add_u32 v{PF2}, s14, v{PF2}
v_and_b32 v2, 15, v1
v_lshrrev_b32 v3, 4, v1
v_lshlrev_b32 v6, 4, v3
v_mul_u32_u24 v7, 416, v2
v_add_u32 v{UR}, v7, v6
v_and_b32 v13, 1, v3
v_lshl_add_u32 v7, v13, 3, v7
v_add_u32 v{UR8}, 192, v7
v_mul_u32_u24 v7, 832, v2
v_add_u32 v{SO}, v7, v6
v_xor_b32 v13, 32, v6
v_cmp_gt_u32 vcc, 8, v2
v_cndmask_b32 v13, v13, v{SO}, vcc
v_add_u32 v{T6R}, {V12B}, v13
v_mul_u32_u24 v7, 832, v3
v_lshl_add_u32 v7, v2, 2, v7
v_add_u32 v{PA}, {BIASB}, v7
v_lshrrev_b32 v4, 3, v2
v_and_b32 v5, 3, v2
v_lshl_add_u32 v7, v4, 2, v5
v_lshlrev_b32 v7, 7, v7
v_and_b32 v13, 4, v2
v_lshl_add_u32 v7, v13, 8, v7
v_and_b32 v13, 2, v2
v_lshlrev_b32 v13, 5, v13
v_lshl_or_b32 v13, v4, 5, v13
v_xor_b32 v13, v13, v6
v_add_u32 v13, {L6B}, v13
v_add_u32 v{VR0}, v7, v13
v_xor_b32 v{VR1}, 64, v{VR0}
v_add_u32 v{VRB}, 32768, v{VR0}
v_add_u32 v{VRB+1}, 32768, v{VR1}
v_lshrrev_b32 v7, 1, v2
v_lshl_add_u32 v7, v7, 7, s{sW1k}
v_and_b32 v5, 1, v2
v_and_b32 v13, 4, v2
v_lshlrev_b32 v13, 4, v13
v_lshl_or_b32 v13, v4, 5, v13
v_xor_b32 v13, v13, v6
v_lshlrev_b32 v14, 6, v5
v_xor_b32 v13, v13, v14
v_add_u32 v7, v7, v13
v_mul_u32_u24 v14, 49152, v5
v_add_u32 v{XA0}, v7, v14
v_lshlrev_b32 v14, 12, v5
v_sub_u32 v{XAE}, v7, v14
v_add_u32 v{XAE}, 4096, v{XAE}
v_xor_b32 v7, 64, v7
v_add_u32 v{XAO}, v7, v14
v_mov_b32 v7, 0x3f80""")
    for l in range(3):
        P(f"""v_cmp_eq_u32 vcc, {l}, v3
v_cndmask_b32 v13, 0, v7, vcc
v_accvgpr_write_b32 a{BG(l)+1}, 0
v_accvgpr_write_b32 a{BG(l)+4}, v13
v_lshlrev_b32 v13, 16, v13
v_accvgpr_write_b32 a{BG(l)+5}, 0
v_accvgpr_write_b32 a{BG(l)}, v13""")
    em.raw("s_waitcnt lgkmcnt(0)")
    P(f"s_add_u32 s{sO}, s12, s15\ns_addc_u32 s{sO+1}, s13, 0")
    while k < C['npro']:
        q = todo[0]; assert not q.war; issue_now(q); k += len(q.ops)
        if k == C['npro'] + C['pf2at']: pf2()
    freed = 0; slack = []
    def barop(g):
        nd = bar_needs(g)
        for q in nd: assert q.issued is not None, f"piece {q.name} not issued at barrier {g} (need {q.need})"
        return Op("s_barrier", 'bar', needs=[q.ops[-1] for q in nd], cost=2), nd
    def elig(q, g):
        if q.est > g: return False
        for o in q.war:
            for r in o.readers:
                if r.seq is None or r.seq >= (em.lg_done if o.private else freed): return False
        return True
    stamps = {}
    if st:
        for i, key in enumerate(C['stamps']): stamps[start[tuple(key)]] = f"s_memtime s[{STAMP0+6+2*i}:{STAMP0+7+2*i}]"
    cur = None; curq = []; lastd = -INF; vi = 0; fill = []; T = 0; tl = {}
    for g in range(-1, NG):
        em.gap = g; o0 = len(em.out); shadow = g >= 0
        if g >= 0:
            if g in stamps: em.raw(stamps[g], nb=8)
            em.emit(mf[g])
        om = len(em.out)
        if g in bars or g == -1:
            b, nd = barop(g)
            em.emit(b); freed = em.lg_done; shadow = False
            slack += [(g - q.issued, q.name) for q in nd if q.issued >= 0]
            if g == -1 and st: em.raw(f"s_memtime s[{STAMP0+4}:{STAMP0+5}]")
        lg, vm = em.need(mf[g + 1]) if 0 <= g < NG - 1 else (0, 0)
        if g + 1 in bars:
            vm = em.need(barop(g + 1)[0])[1]
            if g + 2 < NG: lg = max(lg, em.need(mf[g + 2])[0])
            lg = max(lg, em.lg_done + 1) if em.lg_done < len(em.lg) and em.lg[em.lg_done].gap <= g - em.lg_slack else lg
        if lg or vm: em.wait(lg, vm); shadow = False
        sp = C['sp0'] if g < G20 + 16 else C['sp']
        if cur is None:
            el = [q for q in todo if elig(q, g)]
            if el: cur = el[0]; curq = list(cur.pre) + list(cur.ops); todo.remove(cur)
        if cur and curq[0].kind == 'salu' and (shadow or g < G20): em.emit(curq.pop(0))
        for r in rgap[g + 1]:
            for q in r.pieces:
                if q.private: r.needs.append(q.ops[-1])
            em.emit(r)
        nf = len(rgap[g + 1]) + (2 if g in bars else 0)
        if g == C['pf2at'] and g >= 0: pf2()
        if cur and curq[0].kind == 'dma' and g - lastd >= sp:
            em.emit(curq.pop(0)); lastd = g; nf += 2
            if not curq: cur.issued = g; cur = None
        elif stores and stores[0].after.gap is not None:
            em.emit(stores.pop(0)); nf += 4
        while vi < len(vq) and (g == NG - 1 or (vq[vi].e <= g and (nf < 2 or vq[vi].late <= g or (g < G20 and nf < 3)))):
            em.emit(vq[vi]); vi += 1; nf += 1
            if g == NG - 1 and stores and stores[0].after.gap is not None: em.emit(stores.pop(0))
        c = sum(x[2] for x in em.out[o0:]) - (1 if g >= 0 and len(em.out) > om and em.out[om][0].startswith('s_') and not em.out[om][0].startswith('s_barrier') else 0)
        fill.append(c); tl[g] = T; T += max(4, c)
    assert not todo and cur is None and not stores and vi == len(vq)
    if st:
        ns = 3 + len(C['stamps'])
        em.raw(f"s_memtime s[{STAMP0+2*ns}:{STAMP0+2*ns+1}]"); ns += 1
        em.raw("s_waitcnt vmcnt(0)")
        em.raw(f"s_memtime s[{STAMP0+2*ns}:{STAMP0+2*ns+1}]"); ns += 1
        assert STAMP0 + 2 * ns <= 98
        em.raw("s_memrealtime s[100:101]")
        em.raw("s_waitcnt lgkmcnt(0)")
        em.raw(f"s_mov_b32 s16, s60\ns_mov_b32 s17, s61\ns_mov_b32 s18, 65536\ns_mov_b32 s19, 0x20000")
        em.raw(f"s_lshl_b32 s20, s2, 2\ns_add_u32 s20, s20, s{sW}\ns_lshl_b32 s20, s20, 6\nv_mov_b32 v1, s20\ns_mov_b64 exec, 1")
        for i in range(12): em.raw(f"v_mov_b32 v0, s{STAMP0+2*i}\ns_nop 1\nbuffer_store_dword v0, v1, s[16:19], 0 offen offset:{4*i}\ns_nop 1")
    if C['verbose']:
        print("slots", T, "waits", em.nwait, "nops", em.nnop, "bytes", sum(x[3] for x in em.out), "bars", barl)
        print("phase slots", {k: tl[v] for k, v in start.items() if k[2] == 0 and k[0] == 'G2'})
        print("fill", "".join(str(min(c, 9)) for c in fill))
        print("slack", [(s_, n) for s_, n in slack])
    L = ["; DCN-v2 cross network, generated by gen/v2.py", "; @launch grid=(256,1,1) block=(256,1,1) lds=163840",
         '.amdgcn_target "amdgcn-amd-amdhsa--gfx950"', ".text", f".globl {NAME}_kernel", ".p2align 8", f".type {NAME}_kernel,@function", f"{NAME}_kernel:"]
    L += [t for (t, gap, c, nb) in em.out]
    L.append("L_end:\ns_endpgm")
    L.append(f'.section .rodata,"a"\n.p2align 6\n.amdhsa_kernel {NAME}_kernel\n  .amdhsa_next_free_vgpr 512\n  .amdhsa_next_free_sgpr 102\n  .amdhsa_accum_offset 256\n  .amdhsa_group_segment_fixed_size 0\n  .amdhsa_kernarg_size 56\n  .amdhsa_user_sgpr_count 2\n  .amdhsa_user_sgpr_kernarg_segment_ptr 1\n  .amdhsa_system_sgpr_workgroup_id_x 1\n.end_amdhsa_kernel')
    return "\n".join(L) + "\n"

if __name__ == "__main__":
    kw = json.loads(sys.argv[2]) if len(sys.argv) > 2 else {}
    s = gen(verbose=True, **kw)
    open(sys.argv[1], "w").write(s)
```

```python
import sys, json
from sched import *
from fast import Pro, valu, salu, srd, NAME
L6B = 53248; VB = 65536; U4 = 90112; V12B = 139264; BIASB = 152576
Yr = lambda p, t: 8 * p + 4 * t
XE_ = lambda p: 104 + 8 * p
XO_ = lambda p: 108 + 8 * p
HA = lambda i: 208 + 4 * i
XF = [236, 240]; TM = [244, 246]
UR, UR8, VR0, VR1, T6R, L16, VD, SO = range(248, 256)
XD, XA0, XAE, XAO, PA, PF1, PF2 = 8, 9, 10, 11, 12, 16, 17
PA = 243; VRB = 20
sW = 3; sX = 16; sO = 20; sV = 24; sU = 28; sU4 = 32; sB = 36; sP = 40
sVS = [44, 45, 46]; sW1k = 47; sWV = 48; sWp = 49; sW1664 = 50; sL6a = 51; sL6b = 52; sT = 53; sMask = 54; sLo = 56; sT0 = 58; sT1 = 59
STAMP0 = 78
DEF = dict(stamps=None, D=16, D0=8, NA=18, slack=7, sp=3, sp0=1, npro=12, lag=2, xaux="", saux="sc0 sc1", waux="", pf=True,
           bar0=14, bar0off=0, baroff=0, barper=30, vcap=2, mdist=3, u4est=4, verbose=False, pf2at=10, last_bar=20, vrot=0, xs=1.0, n1=12)

class Piece:
    def __init__(s, name, region, pre, op, private=False):
        s.name = name; s.region = region; s.pre = pre; s.ops = op if isinstance(op, list) else [op]; s.private = private
        s.readers = []; s.need = INF; s.est = -INF; s.issued = None; s.war = []
def dma(voff, s, soff, off, aux=""):
    so = "0" if soff is None else soff
    return Op(f"buffer_load_dwordx4 v{voff}, s[{s}:{s+3}], {so} offen" + (f" offset:{off}" if off else "") + (f" {aux}" if aux else "") + " lds",
              'dma', rd=[f"v{voff}", 'm0'] + srd(s) + ([] if soff is None else [soff]))
def m0(base, imm):
    assert imm >= 0
    if imm == 0: return salu(f"s_mov_b32 m0, s{base}", wr=['m0'], rd=[f"s{base}"])
    return salu(f"s_add_u32 m0, s{base}, {imm}", wr=['m0'], rd=[f"s{base}"], nb=8)
def dsr(p, d, n, addr, off, wv, pieces):
    mn = {4: 'ds_read_b128', 2: 'ds_read_b64'}[n]
    assert 0 <= off < 65536
    o = Op(f"{mn} {p}[{d}:{d+n-1}], v{addr} offset:{off}", 'dsr', rd=[f"v{addr}"], wr=[f"{p}{d+i}" for i in range(n)])
    o.wv = wv; o.pieces = pieces
    for q in pieces: q.readers.append(o)
    return o

def gen(**kw):
    C = dict(DEF); C.update(kw)
    NA = C['NA']; REM = lambda p: 4 * NA + 6 * p; HB = lambda s: 4 * NA + 78 + 4 * s; BG = lambda l: 4 * NA + 90 + 6 * l
    assert BG(3) <= 256
    em = Emitter(lg_slack=C['slack']); P = Pro(em); W = C['waux']
    st = C['stamps'] is not None
    xslot = lambda c: 2 * c if c <= 6 else 2 * (c - 7) + 1
    xp = {c: Piece(('x', c), [(4096 * xslot(c), 4096 * xslot(c) + 4096)], [m0(sW1k, 4096 * xslot(c) - 128 * c)], dma(XD, sX, None, 128 * c, C['xaux']), True) for c in range(13)}
    if C.get('xlin'):
        for i, c in enumerate([0, 6, 7, 1, 8, 2, 9, 3, 10, 4, 11, 5, 12]):
            xp[c].pre = [salu(f"s_mov_b32 s62, {1024*i}", wr=['s62'])] + xp[c].pre; xp[c].ops = [dma(L16, sX, 's62', 0, C['xaux'])]
    up = {}
    for k in range(64):
        if k < 52:
            a = 4096 * (k % 13); pre = []
            if k % 13 == 0 and k:
                pre = [salu(f"s_add_u32 s{sU}, s{sU}, 53248\ns_addc_u32 s{sU+1}, s{sU+1}, 0", wr=[f"s{sU}", f"s{sU+1}"], nb=12)]
                pre[0].cost = 2; pre[0].wv = k // 13
            up[k] = Piece(('u', k), [(a, a + 4096)], pre + [m0(sW1k, a)], dma(L16, sU, 'm0', 0, W))
            up[k].ops[0].ev = {f"s{sU}": k // 13 or None}
        else:
            a = U4 + 4096 * (k - 52)
            up[k] = Piece(('u', k), [(a, a + 4096)], [m0(sW1k, a)], dma(L16, sU4, 'm0', 0, W))
    vp = {}; l6 = {}; v12 = {}
    def vsl(l, a):
        if l == 0: return VB + 12288 * (a if a > 3 else (a + 2) % 4)
        return VB + 12288 * ((6 * l + a + C['vrot']) % 4)
    for l in range(3):
        for a in range(6):
            sl = vsl(l, a)
            for s in range(3):
                pre = [salu(f"s_mov_b32 s{sVS[s]}, {86528*l + 26624*s}", wr=[f"s{sVS[s]}"], nb=8)] if (a == 0 and l > 0) else []
                vp[(l, a, s)] = Piece(('v', l, a, s), [(sl + 2048 * s, sl + 2048 * s + 2048), (sl + 6144 + 2048 * s, sl + 6144 + 2048 * s + 2048)],
                                      pre + [m0(sWV, sl + 2048 * s - 128 * a)], dma(VD, sV, f"s{sVS[s]}", 128 * a, W))
                if pre: pre[0].wv = l
                vp[(l, a, s)].ops[0].ev = {f"s{sVS[s]}": l or None}
        b = L6B + 6144 * (l % 2)
        adv = lambda r: [salu(f"s_add_u32 s{r}, s{r}, 86528", wr=[f"s{r}"], nb=8)] if l else []
        l6[(l, 0)] = Piece(('l6', l, 0), [(b, b + 4096)], adv(sL6a) + [m0(sW1k, b)], dma(VD, sV, f"s{sL6a}", 0, W))
        l6[(l, 1)] = Piece(('l6', l, 1), [(b + 4096, b + 6144)], adv(sL6b) + [m0(sWp, b + 4096)], dma(VD, sV, f"s{sL6b}", 0, W))
        b = V12B + 6656 * (l % 2)
        v12[l] = Piece(('v12', l), [(b, b + 6656)], adv(sT) + [m0(sW1664, b)], [dma(L16, sV, f"s{sT}", 0, W), dma(L16, sV, f"s{sT}", 640, W)])
    bp = Piece(('b',), [(BIASB, BIASB + 4096)], [m0(sW1k, BIASB)], dma(L16, sB, f"s{sW1k}", 0, W))
    seq = [('G1', 0, p) for p in range(13)]
    lag = C['lag']
    for l in range(3):
        seq.append(('G2', l, (0, 1)))
        done = 0
        for p in range(1, 13):
            if p > 1: seq.append(('G2', l, (p,)))
            if l < 2 and p - lag >= 0: seq.append(('G1', l + 1, p - lag)); done = p - lag + 1
        if l < 2: seq += [('G1', l + 1, p) for p in range(done, 13)]
    mf = []; rd = []; g1 = {}; g2 = {}; start = {}; ring = [0]
    def rslot():
        r = 4 * (ring[0] % NA); ring[0] += 1; return r
    def mfma(d, a, bp_, b, c, wv, ev):
        cs = c if isinstance(c, str) else rng('v', d, 4)
        cr = [] if isinstance(c, str) else vr(d, 4)
        br = [f"{bp_}{b+i}" for i in range(4)]
        m = Op(f"v_mfma_f32_16x16x32_bf16 {rng('v', d, 4)}, a[{a}:{a+3}], {bp_}[{b}:{b+3}], {cs}", 'mfma16', rd=ar(a, 4) + br + cr, wr=vr(d, 4), srcc=cr)
        m.wv = wv; m.ev = ev; m.g = len(mf); mf.append(m); return m
    for (kd, l, p) in seq:
        start[(kd, l, p if kd == 'G1' else p[0])] = len(mf)
        if kd == 'G1':
            xb = XO_(p) if l == 0 else XF[p % 2]
            for i in range(7):
                a = rslot(); s, t = i >> 1, i & 1
                if i == 6: r = dsr('a', a, 4, T6R, 6656 * (l % 2) + 64 * p, ('V', l, p, i), [v12[l]])
                else:
                    c, h = (p >> 1, p & 1) if t == 0 else (6 + ((p + 1) >> 1), (p + 1) & 1)
                    if c == 6: base = L6B + 6144 * (l % 2); pc = l6[(l, s >> 1)]
                    else:
                        aa = c if c < 6 else c - 7
                        base = vsl(l, aa) + (6144 if c > 6 else 0); pc = vp[(l, aa, s)]
                    if base >= VB + 49152: r = dsr('a', a, 4, VRB + h, base + 2048 * s - L6B - 32768, ('V', l, p, i), [pc])
                    else: r = dsr('a', a, 4, VR1 if h else VR0, base + 2048 * s - L6B, ('V', l, p, i), [pc])
                ev = {q: ('V', l, p, i) for q in ar(a, 4)}; ev.update({q: ('x', l, p) for q in vr(xb, 4)})
                if p: ev.update({q: ('h', l, i, p) for q in vr(HA(i), 4)})
                g1[(l, p, i)] = mfma(HA(i), a, 'v', xb, None if p else "0", ('h', l, i, p + 1), ev); rd.append(r)
        else:
            for s in range(4):
                for b in p:
                    B = 13 * l + b; lo = 6656 * B
                    pcs = [up[k] for k in range(lo // 4096, (lo + 6655) // 4096 + 1)]
                    far = B >= 32
                    off = lo - 212992 if far else lo % 53248
                    for t in range(2):
                        first = l == 0 and s == 0
                        if s < 3:
                            a = rslot(); r = dsr('a', a, 4, VR0 if far else UR, off + 208 * t + 64 * s, ('U', l, b, t, s), pcs)
                            ev = {q: ('U', l, b, t, s) for q in ar(a, 4)}; hb = HB(s); ev.update({q: ('hb', l, s) for q in ar(hb, 4)})
                        else:
                            r = dsr('a', REM(b) + 4 * t, 2, VR1 if far else UR8, off + 208 * t, ('U', l, b, t, s), pcs)
                            a = REM(b) + 2 * t; hb = BG(l) + 2 - 2 * t
                            ev = {q: ('U', l, b, t, s) for q in ar(REM(b) + 4 * t, 2)}; ev.update({q: ('P', b) for q in ar(REM(b) + 2, 2)})
                            ev.update({q: ('hb', l, 3) for q in ar(BG(l) + 2, 2)})
                        r.far = far
                        if not first: ev.update({q: ('y', b, t, 4 * l + s) for q in vr(Yr(b, t), 4)})
                        g2[(l, b, t, s)] = mfma(Yr(b, t), a, 'a', hb, "1.0" if first else None, ('y', b, t, 4 * l + s + 1), ev); rd.append(r)
    NG = len(mf)
    G20 = start[('G2', 0, 0)]
    def Dist(i): return C['D0'] if i < G20 + 16 else min(C['D'], C['D0'] + (i - G20 - 16) // 4)
    rgap = [[] for _ in range(NG + 1)]
    for i, r in enumerate(rd):
        if i < G20 and i % 7 == 0:
            p = i // 7
            ad, off = (XA0, 0) if p == 0 else ((XAE, 4096 * (p - 1)) if p % 2 == 0 else (XAO, 4096 * (p - 1)))
            x = dsr('v', XO_(p), 4, ad, off, ('x', 0, p), [xp[p >> 1], xp[6 + ((p + 1) >> 1)]])
            x.pg = max(-1, i - Dist(i) - 1); rgap[x.pg + 1].append(x)
        r.pg = max(-1, i - Dist(i)); rgap[r.pg + 1].append(r)
    for p in range(13):
        o = Op(f"ds_read2_b32 a[{REM(p)+2}:{REM(p)+3}], v{PA} offset0:{16*p} offset1:{16*p}", 'dsr', rd=vr(PA), wr=ar(REM(p) + 2, 2))
        o.wv = ('P', p); o.pieces = [bp]; bp.readers.append(o); o.pg = G20 - 40 + 3 * p; rgap[o.pg + 1].append(o)
    pieces = list(xp.values()) + list(up.values()) + list(vp.values()) + list(l6.values()) + list(v12.values()) + [bp]
    for q in pieces: q.need = min((r.pg + 0.001 * (rgap[r.pg + 1].index(r))) for r in q.readers)
    pieces.sort(key=lambda q: q.need)
    ov = lambda a, b: any(x0 < y1 and y0 < x1 for (x0, x1) in a.region for (y0, y1) in b.region)
    for i, q in enumerate(pieces): q.war = [o for o in pieces[:i] if ov(o, q)]
    for k in range(52, 64): up[k].est = start[('G1', 2, C['u4est'])]
    bars = set()
    g = C['bar0off'] + C['bar0'] - C['D0'] - 1
    while g < G20 + C['baroff'] - 8: bars.add(g); g += C['bar0']
    for l in range(2):
        g0 = start[('G2', l, 0)] + C['baroff']; n = round(195 / C['barper'])
        for i in range(n): bars.add(g0 + round(i * 195 / n))
    bars.add(start[('G2', 2, 0)] + C['baroff'])
    if C['last_bar'] is not None: bars.add(start[('G2', 2, 0)] + C['baroff'] + C['last_bar'])
    barl = sorted(bars)
    def bar_needs(g):
        nx = min([b for b in barl if b > g] + [NG])
        return [q for q in pieces if not q.private and g <= q.need < nx]
    vq = []
    md = C['mdist']
    def V(op, e, d): op.e = e; op.d = d; vq.append(op)
    def unpack(p):
        for j in range(4):
            e = g1[(0, p, 6)].g + 1; d = G20 + 10 + 8 * p
            V(valu(f"v_lshlrev_b32 v{XE_(p)+j}, 16, v{XO_(p)+j}", vr(XE_(p) + j), vr(XO_(p) + j), wv=('x0', p), ev={f"v{XO_(p)+j}": ('x', 0, p)}), e, d)
            V(valu(f"v_and_b32 v{XO_(p)+j}, s{sMask}, v{XO_(p)+j}", vr(XO_(p) + j), vr(XO_(p) + j), wv=('x0', p), ev={f"v{XO_(p)+j}": ('x', 0, p)}), e, d)
    def hproc(l):
        for s in range(3):
            e = g1[(l, 12, 2 * s + 1)].g + md; d = g2[(l, 0, 0, s)].g - 2
            for j in range(4):
                a, b = HA(2 * s) + j, HA(2 * s + 1) + j
                V(valu(f"v_cvt_pk_bf16_f32 v{a}, v{a}, v{b}", vr(a), vr(a) + vr(b), nb=8, wv=('hc',), ev={f"v{a}": ('h', l, 2 * s, 13), f"v{b}": ('h', l, 2 * s + 1, 13)}), e, d)
            for j in range(4):
                a = HA(2 * s) + j
                V(valu(f"v_accvgpr_write_b32 a{HB(s)+j}, v{a}", ar(HB(s) + j), vr(a), nb=8, wv=('hb', l, s), ev={f"v{a}": ('hc',)}), e, d)
        e = g1[(l, 12, 6)].g + md; d = g2[(l, 0, 0, 3)].g - 2; a = HA(6)
        for j in range(2): V(valu(f"v_cvt_pk_bf16_f32 v{a+2*j}, v{a+2*j}, v{a+2*j+1}", vr(a + 2 * j), vr(a + 2 * j, 2), nb=8, wv=('hc',), ev={q: ('h', l, 6, 13) for q in vr(a + 2 * j, 2)}), e, d)
        for j in range(2): V(valu(f"v_cndmask_b32_e64 v{a+2*j}, 0, v{a+2*j}, s[{sLo}:{sLo+1}]", vr(a + 2 * j), vr(a + 2 * j), nb=8, wv=('hc',)), e, d)
        for j in range(2): V(valu(f"v_accvgpr_write_b32 a{BG(l)+2+j}, v{a+2*j}", ar(BG(l) + 2 + j), vr(a + 2 * j), nb=8, wv=('hb', l, 3)), e, d)
    stores = []
    def xproc(l, p):
        e = g2[(l, p, 1, 3)].g + md
        if l < 2:
            xb = XF[p % 2]; d = g1[(l + 1, p, 0)].g - 2
            e2 = max(e, g1[(l + 1, p - 2, 6)].g + 1 if p >= 2 else e)
        else: xb = HA(p % 7); d = min(NG - 1, e + 10); e2 = e
        for j in range(4):
            t = TM[j % 2]
            V(valu(f"v_mul_f32 v{t}, v{XE_(p)+j}, v{Yr(p,0)+j}", vr(t), vr(XE_(p) + j) + vr(Yr(p, 0) + j), wv=('t0', l, p, j), ev={f"v{XE_(p)+j}": ('x0', p), f"v{Yr(p,0)+j}": ('y', p, 0, 4 * l + 4)}), e, d)
            V(valu(f"v_mul_f32 v{t+1}, v{XO_(p)+j}, v{Yr(p,1)+j}", vr(t + 1), vr(XO_(p) + j) + vr(Yr(p, 1) + j), wv=('t1', l, p, j), ev={f"v{XO_(p)+j}": ('x0', p), f"v{Yr(p,1)+j}": ('y', p, 1, 4 * l + 4)}), e, d)
            V(valu(f"v_cvt_pk_bf16_f32 v{xb+j}, v{t}, v{t+1}", vr(xb + j), vr(t, 2), nb=8, wv=('x', l + 1, p), ev={f"v{t}": ('t0', l, p, j), f"v{t+1}": ('t1', l, p, j)}), e2, d)
        if l == 2:
            s_ = Op(f"buffer_store_dwordx4 v[{xb}:{xb+3}], v{SO}, s[{sO}:{sO+3}], 0 offen offset:{64*p}" + (f" {C['saux']}" if C['saux'] else ""), 'st', rd=vr(xb, 4) + vr(SO) + srd(sO))
            s_.ev = {q: ('x', 3, p) for q in vr(xb, 4)}; s_.after = vq[-1]; stores.append(s_)
    for p in range(12): unpack(p)
    hproc(0); unpack(12)
    for l in range(3):
        for p in range(13): xproc(l, p)
        if l < 2: hproc(l + 1)
        if l == 1:
            e = rd[g1[(2, 12, 5)].g].pg + 1; d = rd[g2[(2, 6, 0, 0)].g].pg - 1
            V(valu(f"v_add_u32 v{VR0}, {U4}, v{UR}", vr(VR0), vr(UR), nb=8, wv='far'), e, d)
            V(valu(f"v_add_u32 v{VR1}, {U4}, v{UR8}", vr(VR1), vr(UR8), nb=8, wv='far'), e, d)
    for r in rd:
        if getattr(r, 'far', False): r.ev = {r.rd[0]: 'far'}
        elif r.rd[0] in vr(VR0, 2): r.ev = {r.rd[0]: None}
    for i in range(1, len(vq)): vq[i].e = max(vq[i].e, vq[i - 1].e)
    nxt = INF; cnt = 0
    for o in reversed(vq):
        d = min(o.d, nxt)
        if d == nxt:
            cnt += 1
            if cnt > C['vcap'] and d > o.e: d -= 1; cnt = 1
        else: cnt = 1
        o.late = d; nxt = d
        assert o.late >= o.e or o.e >= NG - 1, (o.text, o.e, o.late)
    if st: em.raw(f"s_memtime s[{STAMP0}:{STAMP0+1}]"); em.raw("s_memrealtime s[98:99]")
    enc = C.get('enc')
    if enc: em.raw("s_memrealtime s[98:99]")
    em.raw("s_load_dwordx4 s[4:7], s[0:1], 0"); em.raw("s_load_dwordx4 s[8:11], s[0:1], 16")
    P(f"""s_cmp_ge_u32 s2, 256
s_cbranch_scc1 L_end
v_lshrrev_b32 v2, 6, v0
v_and_b32 v1, 63, v0
v_readfirstlane_b32 s{sW}, v2
v_lshrrev_b32 v3, 3, v1
v_lshrrev_b32 v4, 5, v1
v_and_b32 v5, 16, v1
v_lshlrev_b32 v{L16}, 4, v1
v_lshlrev_b32 v5, 2, v5
v_lshl_or_b32 v5, v4, 5, v5
v_and_b32 v6, 112, v{L16}
v_xor_b32 v5, v5, v6
v_mul_u32_u24 v3, 1664, v3
v_add_u32 v{XD}, v3, v5
v_mul_u32_u24 v4, 6656, v4
s_and_b32 s{sT0}, s{sW}, 1
s_lshr_b32 s{sT1}, s{sW}, 1
s_lshl_b32 s{sW1k}, s{sW}, 10
s_lshl_b32 s{sWp}, s{sT0}, 10
s_mul_i32 s{sWV}, s{sT1}, 6144
s_add_u32 s{sWV}, s{sWV}, s{sWp}
s_mul_i32 s{sL6a}, s{sT1}, {26624-896}
s_add_u32 s{sL6a}, s{sL6a}, 768
s_mul_i32 s{sL6b}, s{sT1}, 896
s_mul_i32 s{sT}, s{sT0}, 6656
s_add_u32 s{sT}, s{sT}, s{sL6b}
s_sub_u32 s{sL6b}, {53248+768}, s{sL6b}
v_add3_u32 v{VD}, v{XD}, v4, s{sT}
s_mul_i32 s{sW1664}, s{sW}, 1664
s_add_u32 s{sT}, s{sW1664}, 79872
s_mov_b32 s{sVS[0]}, 0
s_mov_b32 s{sVS[1]}, 26624
s_mov_b32 s{sVS[2]}, 53248
s_lshr_b32 s14, s2, 3
s_lshl_b32 s14, s14, 7
s_mul_i32 s15, s{sT1}, {11*4096}
s_add_u32 s15, s15, s14
v_lshlrev_b32 v{PF2}, 12, v1
v_add_u32 v{PF1}, s15, v{PF2}
s_lshl_b32 s15, s2, 2
s_add_u32 s15, s15, s{sW}
s_mul_i32 s15, s15, 13312
s_mov_b32 s{sX+2}, 13312
s_mov_b32 s{sX+3}, 0x20000
s_mov_b32 s{sV+2}, 259584
s_mov_b32 s{sV+3}, 0x20000
s_mov_b32 s{sP+2}, 259584
s_mov_b32 s{sP+3}, 0x20000
s_cmp_eq_u32 s{sT0}, 1""")
    em.raw("s_waitcnt lgkmcnt(0)")
    if st: em.raw(f"s_memtime s[{STAMP0+2}:{STAMP0+3}]")
    P(f"""s_cselect_b32 s{sP}, s6, s8
s_cselect_b32 s{sP+1}, s7, s9
s_add_u32 s{sX}, s4, s15
s_addc_u32 s{sX+1}, s5, 0
s_mov_b32 s{sV}, s8
s_mov_b32 s{sV+1}, s9""")
    if C['pf']:
        P("s_mov_b64 exec, 0x7ff")
        em.emit(Op(f"buffer_load_dword v18, v{PF1}, s[{sP}:{sP+3}], 0 offen", 'vld', rd=vr(PF1) + srd(sP), wr=['v18']))
        P("s_mov_b64 exec, -1")
    todo = sorted(pieces, key=lambda q: (q.need + 1) * C['xs'] - 1.5 if q.private else q.need)
    def pf2():
        if C['pf']:
            P("s_mov_b64 exec, 0x1fffff")
            em.emit(Op(f"buffer_load_dword v18, v{PF2}, s[{sP}:{sP+3}], 0 offen", 'vld', rd=vr(PF2) + srd(sP), wr=['v18']))
            P("s_mov_b64 exec, -1")
    def issue_now(q):
        for o in q.pre + q.ops: em.emit(o)
        q.issued = em.gap; todo.remove(q)
    k = 0
    while k < C['n1']:
        q = [x for x in todo if x is not bp][0]; issue_now(q); k += len(q.ops)
    em.raw("s_load_dwordx2 s[12:13], s[0:1], 32")
    if st: em.raw("s_load_dwordx2 s[60:61], s[0:1], 48")
    P(f"""s_mov_b32 s{sU}, s6
s_mov_b32 s{sU+1}, s7
s_mov_b32 s{sU+2}, 53248
s_mov_b32 s{sU+3}, 0x20000
s_add_u32 s{sU4}, s6, {212992-U4}
s_addc_u32 s{sU4+1}, s7, 0
s_mov_b32 s{sU4+2}, {259584-212992+U4}
s_mov_b32 s{sU4+3}, 0x20000
s_mov_b32 s{sB}, s10
s_mov_b32 s{sB+1}, s11
s_mov_b32 s{sB+2}, 2496
s_mov_b32 s{sB+3}, 0x20000
s_mov_b32 s{sO+2}, 13312
s_mov_b32 s{sO+3}, 0x20000
s_mov_b32 s{sMask}, 0xffff0000
s_mov_b32 s{sLo}, -1
s_mov_b32 s{sLo+1}, 0
s_mul_i32 s{sT1}, s{sT1}, {21*4096}
s_add_u32 s14, s14, s{sT1}
s_add_u32 s14, s14, {22*4096}
v_add_u32 v{PF2}, s14, v{PF2}
v_and_b32 v2, 15, v1
v_lshrrev_b32 v3, 4, v1
v_lshlrev_b32 v6, 4, v3
v_mul_u32_u24 v7, 416, v2
v_add_u32 v{UR}, v7, v6
v_and_b32 v13, 1, v3
v_lshl_add_u32 v7, v13, 3, v7
v_add_u32 v{UR8}, 192, v7
v_mul_u32_u24 v7, 832, v2
v_add_u32 v{SO}, v7, v6
v_xor_b32 v13, 32, v6
v_cmp_gt_u32 vcc, 8, v2
v_cndmask_b32 v13, v13, v{SO}, vcc
v_add_u32 v{T6R}, {V12B}, v13
v_mul_u32_u24 v7, 832, v3
v_lshl_add_u32 v7, v2, 2, v7
v_add_u32 v{PA}, {BIASB}, v7
v_lshrrev_b32 v4, 3, v2
v_and_b32 v5, 3, v2
v_lshl_add_u32 v7, v4, 2, v5
v_lshlrev_b32 v7, 7, v7
v_and_b32 v13, 4, v2
v_lshl_add_u32 v7, v13, 8, v7
v_and_b32 v13, 2, v2
v_lshlrev_b32 v13, 5, v13
v_lshl_or_b32 v13, v4, 5, v13
v_xor_b32 v13, v13, v6
v_add_u32 v13, {L6B}, v13
v_add_u32 v{VR0}, v7, v13
v_xor_b32 v{VR1}, 64, v{VR0}
v_add_u32 v{VRB}, 32768, v{VR0}
v_add_u32 v{VRB+1}, 32768, v{VR1}
v_lshrrev_b32 v7, 1, v2
v_lshl_add_u32 v7, v7, 7, s{sW1k}
v_and_b32 v5, 1, v2
v_and_b32 v13, 4, v2
v_lshlrev_b32 v13, 4, v13
v_lshl_or_b32 v13, v4, 5, v13
v_xor_b32 v13, v13, v6
v_lshlrev_b32 v14, 6, v5
v_xor_b32 v13, v13, v14
v_add_u32 v7, v7, v13
v_mul_u32_u24 v14, 49152, v5
v_add_u32 v{XA0}, v7, v14
v_lshlrev_b32 v14, 12, v5
v_sub_u32 v{XAE}, v7, v14
v_add_u32 v{XAE}, 4096, v{XAE}
v_xor_b32 v7, 64, v7
v_add_u32 v{XAO}, v7, v14
v_mov_b32 v7, 0x3f80""")
    for l in range(3):
        P(f"""v_cmp_eq_u32 vcc, {l}, v3
v_cndmask_b32 v13, 0, v7, vcc
v_accvgpr_write_b32 a{BG(l)+1}, 0
v_accvgpr_write_b32 a{BG(l)+4}, v13
v_lshlrev_b32 v13, 16, v13
v_accvgpr_write_b32 a{BG(l)+5}, 0
v_accvgpr_write_b32 a{BG(l)}, v13""")
    em.raw("s_waitcnt lgkmcnt(0)")
    P(f"s_add_u32 s{sO}, s12, s15\ns_addc_u32 s{sO+1}, s13, 0")
    while k < C['npro']:
        q = todo[0]; assert not q.war; issue_now(q); k += len(q.ops)
        if k == C['npro'] + C['pf2at']: pf2()
    freed = 0; slack = []
    def barop(g):
        nd = bar_needs(g)
        for q in nd: assert q.issued is not None, f"piece {q.name} not issued at barrier {g} (need {q.need})"
        return Op("s_barrier", 'bar', needs=[q.ops[-1] for q in nd], cost=2), nd
    def elig(q, g):
        if q.est > g: return False
        for o in q.war:
            for r in o.readers:
                if r.seq is None or r.seq >= (em.lg_done if o.private else freed): return False
        return True
    stamps = {}
    if st:
        for i, key in enumerate(C['stamps']): stamps[start[tuple(key)]] = f"s_memtime s[{STAMP0+6+2*i}:{STAMP0+7+2*i}]"
    if isinstance(enc, list): stamps[start[tuple(enc)]] = "s_memrealtime s[96:97]"
    cur = None; curq = []; lastd = -INF; vi = 0; fill = []; T = 0; tl = {}
    for g in range(-1, NG):
        em.gap = g; o0 = len(em.out); shadow = g >= 0
        if g >= 0:
            if g in stamps: em.raw(stamps[g], nb=8)
            em.emit(mf[g])
        om = len(em.out)
        if g in bars or g == -1:
            b, nd = barop(g)
            em.emit(b); freed = em.lg_done; shadow = False
            slack += [(g - q.issued, q.name) for q in nd if q.issued >= 0]
            if g == -1 and enc == 'bar0': em.raw("s_memrealtime s[96:97]")
            if g == -1 and st: em.raw(f"s_memtime s[{STAMP0+4}:{STAMP0+5}]")
        lg, vm = em.need(mf[g + 1]) if 0 <= g < NG - 1 else (0, 0)
        if g + 1 in bars:
            vm = em.need(barop(g + 1)[0])[1]
            if g + 2 < NG: lg = max(lg, em.need(mf[g + 2])[0])
            lg = max(lg, em.lg_done + 1) if em.lg_done < len(em.lg) and em.lg[em.lg_done].gap <= g - em.lg_slack else lg
        if lg or vm: em.wait(lg, vm); shadow = False
        sp = C['sp0'] if g < G20 + 16 else C['sp']
        if cur is None:
            el = [q for q in todo if elig(q, g)]
            if el: cur = el[0]; curq = list(cur.pre) + list(cur.ops); todo.remove(cur)
        if cur and curq[0].kind == 'salu' and (shadow or g < G20): em.emit(curq.pop(0))
        for r in rgap[g + 1]:
            for q in r.pieces:
                if q.private: r.needs.append(q.ops[-1])
            em.emit(r)
        nf = len(rgap[g + 1]) + (2 if g in bars else 0)
        if g == C['pf2at'] and g >= 0: pf2()
        if cur and curq[0].kind == 'dma' and g - lastd >= sp:
            em.emit(curq.pop(0)); lastd = g; nf += 2
            if not curq: cur.issued = g; cur = None
        elif stores and stores[0].after.gap is not None:
            em.emit(stores.pop(0)); nf += 4
        while vi < len(vq) and (g == NG - 1 or (vq[vi].e <= g and (nf < 2 or vq[vi].late <= g or (g < G20 and nf < 3)))):
            em.emit(vq[vi]); vi += 1; nf += 1
            if g == NG - 1 and stores and stores[0].after.gap is not None: em.emit(stores.pop(0))
        c = sum(x[2] for x in em.out[o0:]) - (1 if g >= 0 and len(em.out) > om and em.out[om][0].startswith('s_') and not em.out[om][0].startswith('s_barrier') else 0)
        fill.append(c); tl[g] = T; T += max(4, c)
    assert not todo and cur is None and not stores and vi == len(vq)
    if st:
        ns = 3 + len(C['stamps'])
        em.raw(f"s_memtime s[{STAMP0+2*ns}:{STAMP0+2*ns+1}]"); ns += 1
        em.raw("s_waitcnt vmcnt(0)")
        em.raw(f"s_memtime s[{STAMP0+2*ns}:{STAMP0+2*ns+1}]"); ns += 1
        assert STAMP0 + 2 * ns <= 98
        em.raw("s_memrealtime s[100:101]")
        em.raw("s_waitcnt lgkmcnt(0)")
        em.raw(f"s_mov_b32 s16, s60\ns_mov_b32 s17, s61\ns_mov_b32 s18, 65536\ns_mov_b32 s19, 0x20000")
        em.raw(f"s_lshl_b32 s20, s2, 2\ns_add_u32 s20, s20, s{sW}\ns_lshl_b32 s20, s20, 6\nv_mov_b32 v1, s20\ns_mov_b64 exec, 1")
        for i in range(12): em.raw(f"v_mov_b32 v0, s{STAMP0+2*i}\ns_nop 1\nbuffer_store_dword v0, v1, s[16:19], 0 offen offset:{4*i}\ns_nop 1")
    if enc:
        if enc == 'end': em.raw("s_memrealtime s[96:97]")
        em.raw("s_waitcnt vmcnt(0)")
        if enc == 'drain': em.raw("s_memrealtime s[96:97]")
        em.raw("s_waitcnt lgkmcnt(0)\nL_sp:\ns_memrealtime s[100:101]\ns_waitcnt lgkmcnt(0)\ns_sub_u32 s100, s100, s96\ns_cmp_lt_u32 s100, 2000\ns_cbranch_scc1 L_sp")
    if C['verbose']:
        print("slots", T, "waits", em.nwait, "nops", em.nnop, "bytes", sum(x[3] for x in em.out), "bars", barl)
        print("phase slots", {k: tl[v] for k, v in start.items() if k[2] == 0 and k[0] == 'G2'})
        print("fill", "".join(str(min(c, 9)) for c in fill))
        print("slack", [(s_, n) for s_, n in slack])
    L = ["; DCN-v2 cross network, generated by gen/v2.py", "; @launch grid=(256,1,1) block=(256,1,1) lds=163840",
         '.amdgcn_target "amdgcn-amd-amdhsa--gfx950"', ".text", f".globl {NAME}_kernel", ".p2align 8", f".type {NAME}_kernel,@function", f"{NAME}_kernel:"]
    L += [t for (t, gap, c, nb) in em.out]
    L.append("L_end:\ns_endpgm")
    L.append(f'.section .rodata,"a"\n.p2align 6\n.amdhsa_kernel {NAME}_kernel\n  .amdhsa_next_free_vgpr 512\n  .amdhsa_next_free_sgpr 102\n  .amdhsa_accum_offset 256\n  .amdhsa_group_segment_fixed_size 0\n  .amdhsa_kernarg_size 56\n  .amdhsa_user_sgpr_count 2\n  .amdhsa_user_sgpr_kernarg_segment_ptr 1\n  .amdhsa_system_sgpr_workgroup_id_x 1\n.end_amdhsa_kernel')
    return "\n".join(L) + "\n"

if __name__ == "__main__":
    kw = json.loads(sys.argv[2]) if len(sys.argv) > 2 else {}
    s = gen(verbose=True, **kw)
    open(sys.argv[1], "w").write(s)
```

```python
import sys, json
from sched import *
from fast import Pro, valu, salu, srd, NAME
U4 = 53248; VB = 77824; L6B = 126976; V12B = 139264; BIASB = 152576
Yr = lambda p, t: 8 * p + 4 * t
XE_ = lambda p: 104 + 8 * p
XO_ = lambda p: 108 + 8 * p
HA = lambda i: 208 + 4 * i
XF = [236, 240]; TM = [244, 246]
UR, UR8, VR0, VR1, T6R, L16, VD, SO = range(248, 256)
XD, XA0, XAE, XAO, PA, PF1, PF2 = 8, 9, 10, 11, 12, 16, 17
PA = 243; VRB = 20
sW = 3; sX = 16; sO = 20; sV = 24; sU = 28; sU4 = 32; sB = 36; sP = 40
sVS = [44, 45, 46]; sW1k = 47; sWV = 48; sWp = 49; sW1664 = 50; sL6a = 51; sL6b = 52; sT = 53; sMask = 54; sLo = 56; sT0 = 58; sT1 = 59
STAMP0 = 78
DEF = dict(stamps=None, D=16, D0=8, NA=18, slack=7, sp=3, sp0=1, npro=12, lag=2, xaux="", saux="sc0 sc1", waux="", pf=True,
           bar0=14, bar0off=0, baroff=0, barper=30, vcap=2, mdist=3, u4est=4, verbose=False, pf2at=10, last_bar=20, mode='A', Dx=5)

class Piece:
    def __init__(s, name, region, pre, op, private=False):
        s.name = name; s.region = region; s.pre = pre; s.ops = op if isinstance(op, list) else [op]; s.private = private
        s.readers = []; s.need = INF; s.est = -INF; s.issued = None; s.war = []
def dma(voff, s, soff, off, aux=""):
    so = "0" if soff is None else soff
    return Op(f"buffer_load_dwordx4 v{voff}, s[{s}:{s+3}], {so} offen" + (f" offset:{off}" if off else "") + (f" {aux}" if aux else "") + " lds",
              'dma', rd=[f"v{voff}", 'm0'] + srd(s) + ([] if soff is None else [soff]))
def m0(base, imm):
    assert imm >= 0
    if imm == 0: return salu(f"s_mov_b32 m0, s{base}", wr=['m0'], rd=[f"s{base}"])
    return salu(f"s_add_u32 m0, s{base}, {imm}", wr=['m0'], rd=[f"s{base}"], nb=8)
def dsr(p, d, n, addr, off, wv, pieces):
    mn = {4: 'ds_read_b128', 2: 'ds_read_b64'}[n]
    assert 0 <= off < 65536
    o = Op(f"{mn} {p}[{d}:{d+n-1}], v{addr} offset:{off}", 'dsr', rd=[f"v{addr}"], wr=[f"{p}{d+i}" for i in range(n)])
    o.wv = wv; o.pieces = pieces
    for q in pieces: q.readers.append(o)
    return o

def gen(**kw):
    C = dict(DEF); C.update(kw)
    NA = C['NA']; REM = lambda p: 4 * NA + 6 * p; HB = lambda s: 4 * NA + 78 + 4 * s; BG = lambda l: 4 * NA + 90 + 6 * l
    assert BG(3) <= 256
    em = Emitter(lg_slack=C['slack']); P = Pro(em); W = C['waux']
    st = C['stamps'] is not None
    MA = C['mode'] == 'A'; XA = lambda p: BG(3) + 4 * p
    xslot = lambda c: 2 * c if c <= 6 else 2 * (c - 7) + 1
    xp = {c: Piece(('x', c), [(4096 * xslot(c), 4096 * xslot(c) + 4096)], [m0(sW1k, 4096 * xslot(c) - 128 * c)], dma(XD, sX, None, 128 * c, C['xaux']), True) for c in range(13)}
    up = {}
    for k in range(64):
        if k < 52:
            a = 4096 * (k % 13); pre = []
            if k % 13 == 0 and k:
                pre = [salu(f"s_add_u32 s{sU}, s{sU}, 53248\ns_addc_u32 s{sU+1}, s{sU+1}, 0", wr=[f"s{sU}", f"s{sU+1}"], nb=12)]
                pre[0].cost = 2; pre[0].wv = k // 13
            up[k] = Piece(('u', k), [(a, a + 4096)], pre + [m0(sW1k, a)], dma(L16, sU, 'm0', 0, W))
            up[k].ops[0].ev = {f"s{sU}": k // 13 or None}
        else:
            a = U4 + 4096 * (k - 52)
            up[k] = Piece(('u', k), [(a, a + 4096)], [m0(sW1k, a)], dma(L16, sU4, 'm0', 0, W))
    vp = {}; l6 = {}; v12 = {}
    def vsl(l, a):
        if l == 0: return VB + 12288 * (a - 2)
        return VB + 12288 * ((6 * l + a + 2) % 4)
    for l in range(3):
        for a in range(6):
            sl = vsl(l, a)
            for s in range(3):
                pre = [salu(f"s_mov_b32 s{sVS[s]}, {86528*l + 26624*s}", wr=[f"s{sVS[s]}"], nb=8)] if (a == 0 and l > 0) else []
                vp[(l, a, s)] = Piece(('v', l, a, s), [(sl + 2048 * s, sl + 2048 * s + 2048), (sl + 6144 + 2048 * s, sl + 6144 + 2048 * s + 2048)],
                                      pre + [m0(sWV, sl + 2048 * s - 128 * a)], dma(VD, sV, f"s{sVS[s]}", 128 * a, W))
                if pre: pre[0].wv = l
                vp[(l, a, s)].ops[0].ev = {f"s{sVS[s]}": l or None}
        b = L6B + 6144 * (l % 2)
        adv = lambda r: [salu(f"s_add_u32 s{r}, s{r}, 86528", wr=[f"s{r}"], nb=8)] if l else []
        l6[(l, 0)] = Piece(('l6', l, 0), [(b, b + 4096)], adv(sL6a) + [m0(sW1k, b)], dma(VD, sV, f"s{sL6a}", 0, W))
        l6[(l, 1)] = Piece(('l6', l, 1), [(b + 4096, b + 6144)], adv(sL6b) + [m0(sWp, b + 4096)], dma(VD, sV, f"s{sL6b}", 0, W))
        b = V12B + 6656 * (l % 2)
        v12[l] = Piece(('v12', l), [(b, b + 6656)], adv(sT) + [m0(sW1664, b)], [dma(L16, sV, f"s{sT}", 0, W), dma(L16, sV, f"s{sT}", 640, W)])
    bp = Piece(('b',), [(BIASB, BIASB + 4096)], [m0(sW1k, BIASB)], dma(L16, sB, f"s{sW1k}", 0, W))
    seq = [('G1', 0, p) for p in range(13)]
    lag = C['lag']
    for l in range(3):
        seq.append(('G2', l, (0, 1)))
        done = 0
        for p in range(1, 13):
            if p > 1: seq.append(('G2', l, (p,)))
            if l < 2 and p - lag >= 0: seq.append(('G1', l + 1, p - lag)); done = p - lag + 1
        if l < 2: seq += [('G1', l + 1, p) for p in range(done, 13)]
    mf = []; rd = []; g1 = {}; g2 = {}; start = {}; ring = [0]
    def rslot():
        r = 4 * (ring[0] % NA); ring[0] += 1; return r
    def mfma(d, a, bp_, b, c, wv, ev):
        cs = c if isinstance(c, str) else rng('v', d, 4)
        cr = [] if isinstance(c, str) else vr(d, 4)
        br = [f"{bp_}{b+i}" for i in range(4)]
        m = Op(f"v_mfma_f32_16x16x32_bf16 {rng('v', d, 4)}, a[{a}:{a+3}], {bp_}[{b}:{b+3}], {cs}", 'mfma16', rd=ar(a, 4) + br + cr, wr=vr(d, 4), srcc=cr)
        m.wv = wv; m.ev = ev; m.g = len(mf); mf.append(m); return m
    for (kd, l, p) in seq:
        start[(kd, l, p if kd == 'G1' else p[0])] = len(mf)
        if kd == 'G1':
            xb = XO_(p) if l == 0 else XF[p % 2]; xk = 'v'
            if l == 0 and MA: xb = XA(p); xk = 'a'
            for i in range(7):
                a = rslot(); s, t = i >> 1, i & 1
                if i == 6: r = dsr('a', a, 4, T6R, 6656 * (l % 2) + 64 * p, ('V', l, p, i), [v12[l]])
                else:
                    c, h = (p >> 1, p & 1) if t == 0 else (6 + ((p + 1) >> 1), (p + 1) & 1)
                    if c == 6: base = L6B + 6144 * (l % 2); pc = l6[(l, s >> 1)]
                    else:
                        aa = c if c < 6 else c - 7
                        base = vsl(l, aa) + (6144 if c > 6 else 0); pc = vp[(l, aa, s)]
                    if base < VB: r = dsr('a', a, 4, VRB + h, base + 2048 * s - U4, ('V', l, p, i), [pc])
                    else: r = dsr('a', a, 4, VR1 if h else VR0, base + 2048 * s - VB, ('V', l, p, i), [pc])
                ev = {q: ('V', l, p, i) for q in ar(a, 4)}; ev.update({f'{xk}{xb+z}': ('x', l, p) for z in range(4)})
                if p: ev.update({q: ('h', l, i, p) for q in vr(HA(i), 4)})
                g1[(l, p, i)] = mfma(HA(i), a, xk, xb, None if p else "0", ('h', l, i, p + 1), ev); rd.append(r)
        else:
            for s in range(4):
                for b in p:
                    B = 13 * l + b; lo = 6656 * B
                    pcs = [up[k] for k in range(lo // 4096, (lo + 6655) // 4096 + 1)]
                    far = B >= 32
                    off = lo - 212992 if far else lo % 53248
                    for t in range(2):
                        first = l == 0 and s == 0
                        if s < 3:
                            a = rslot(); r = dsr('a', a, 4, VR0 if far else UR, off + 208 * t + 64 * s, ('U', l, b, t, s), pcs)
                            ev = {q: ('U', l, b, t, s) for q in ar(a, 4)}; hb = HB(s); ev.update({q: ('hb', l, s) for q in ar(hb, 4)})
                        else:
                            r = dsr('a', REM(b) + 4 * t, 2, VR1 if far else UR8, off + 208 * t, ('U', l, b, t, s), pcs)
                            a = REM(b) + 2 * t; hb = BG(l) + 2 - 2 * t
                            ev = {q: ('U', l, b, t, s) for q in ar(REM(b) + 4 * t, 2)}; ev.update({q: ('P', b) for q in ar(REM(b) + 2, 2)})
                            ev.update({q: ('hb', l, 3) for q in ar(BG(l) + 2, 2)})
                        r.far = far
                        if not first: ev.update({q: ('y', b, t, 4 * l + s) for q in vr(Yr(b, t), 4)})
                        g2[(l, b, t, s)] = mfma(Yr(b, t), a, 'a', hb, "1.0" if first else None, ('y', b, t, 4 * l + s + 1), ev); rd.append(r)
    NG = len(mf)
    G20 = start[('G2', 0, 0)]
    def Dist(i): return C['D0'] if i < G20 + 16 else min(C['D'], C['D0'] + (i - G20 - 16) // 4)
    rgap = [[] for _ in range(NG + 1)]
    xr2 = {}; xlate = []
    for i, r in enumerate(rd):
        if i < G20 and i % 7 == 0:
            p = i // 7
            ad, off = (XA0, 0) if p == 0 else ((XAE, 4096 * (p - 1)) if p % 2 == 0 else (XAO, 4096 * (p - 1)))
            x = dsr('v', XO_(p), 4, ad, off, ('x', 0, p), [xp[p >> 1], xp[6 + ((p + 1) >> 1)]])
            if MA:
                xr2[p] = [x, dsr('a', XA(p), 4, ad, off, ('x', 0, p), x.pieces)]
                for z in xr2[p]: z.pg = -2
            else: x.pg = max(-1, i - C['Dx']); xlate.append(x)
        r.pg = max(-1, i - Dist(i)); rgap[r.pg + 1].append(r)
    for p in range(13):
        o = Op(f"ds_read2_b32 a[{REM(p)+2}:{REM(p)+3}], v{PA} offset0:{16*p} offset1:{16*p}", 'dsr', rd=vr(PA), wr=ar(REM(p) + 2, 2))
        o.wv = ('P', p); o.pieces = [bp]; bp.readers.append(o); o.pg = G20 - 40 + 3 * p if MA else -1
        if MA: rgap[o.pg + 1].append(o)
        else: rgap[0].insert(0, o)
    for x in xlate: rgap[x.pg + 1].append(x)
    pieces = list(xp.values()) + list(up.values()) + list(vp.values()) + list(l6.values()) + list(v12.values()) + [bp]
    for q in pieces: q.need = min((r.pg + 0.001 * rgap[r.pg + 1].index(r) if r.pg >= -1 else -2) for r in q.readers)
    pieces.sort(key=lambda q: q.need)
    ov = lambda a, b: any(x0 < y1 and y0 < x1 for (x0, x1) in a.region for (y0, y1) in b.region)
    for i, q in enumerate(pieces): q.war = [o for o in pieces[:i] if ov(o, q)]
    for k in range(52, 64): up[k].est = start[('G1', 2, C['u4est'])]
    bars = set()
    g = C['bar0off'] + C['bar0'] - C['D0'] - 1
    while g < G20 + C['baroff'] - 8: bars.add(g); g += C['bar0']
    if C.get('bars0') is not None: bars = set(C['bars0'])
    for l in range(2):
        g0 = start[('G2', l, 0)] + C['baroff']; n = round(195 / C['barper'])
        for i in range(n): bars.add(g0 + round(i * 195 / n))
    bars.add(start[('G2', 2, 0)] + C['baroff'])
    if C['last_bar'] is not None: bars.add(start[('G2', 2, 0)] + C['baroff'] + C['last_bar'])
    barl = sorted(bars)
    def bar_needs(g):
        nx = min([b for b in barl if b > g] + [NG])
        return [q for q in pieces if not q.private and g <= q.need < nx]
    vq = []
    md = C['mdist']
    def V(op, e, d): op.e = e; op.d = d; vq.append(op)
    def unpack(p):
        for j in range(4):
            e = g1[(0, p, 6)].g + 1; d = G20 + 10 + 8 * p
            V(valu(f"v_lshlrev_b32 v{XE_(p)+j}, 16, v{XO_(p)+j}", vr(XE_(p) + j), vr(XO_(p) + j), wv=('x0', p), ev={f"v{XO_(p)+j}": ('x', 0, p)}), e, d)
            V(valu(f"v_and_b32 v{XO_(p)+j}, s{sMask}, v{XO_(p)+j}", vr(XO_(p) + j), vr(XO_(p) + j), wv=('x0', p), ev={f"v{XO_(p)+j}": ('x', 0, p)}), e, d)
    def hproc(l):
        for s in range(3):
            e = g1[(l, 12, 2 * s + 1)].g + md; d = g2[(l, 0, 0, s)].g - 2
            for j in range(4):
                a, b = HA(2 * s) + j, HA(2 * s + 1) + j
                V(valu(f"v_cvt_pk_bf16_f32 v{a}, v{a}, v{b}", vr(a), vr(a) + vr(b), nb=8, wv=('hc',), ev={f"v{a}": ('h', l, 2 * s, 13), f"v{b}": ('h', l, 2 * s + 1, 13)}), e, d)
            for j in range(4):
                a = HA(2 * s) + j
                V(valu(f"v_accvgpr_write_b32 a{HB(s)+j}, v{a}", ar(HB(s) + j), vr(a), nb=8, wv=('hb', l, s), ev={f"v{a}": ('hc',)}), e, d)
        e = g1[(l, 12, 6)].g + md; d = g2[(l, 0, 0, 3)].g - 2; a = HA(6)
        for j in range(2): V(valu(f"v_cvt_pk_bf16_f32 v{a+2*j}, v{a+2*j}, v{a+2*j+1}", vr(a + 2 * j), vr(a + 2 * j, 2), nb=8, wv=('hc',), ev={q: ('h', l, 6, 13) for q in vr(a + 2 * j, 2)}), e, d)
        for j in range(2): V(valu(f"v_cndmask_b32_e64 v{a+2*j}, 0, v{a+2*j}, s[{sLo}:{sLo+1}]", vr(a + 2 * j), vr(a + 2 * j), nb=8, wv=('hc',)), e, d)
        for j in range(2): V(valu(f"v_accvgpr_write_b32 a{BG(l)+2+j}, v{a+2*j}", ar(BG(l) + 2 + j), vr(a + 2 * j), nb=8, wv=('hb', l, 3)), e, d)
    stores = []
    def xproc(l, p):
        e = g2[(l, p, 1, 3)].g + md
        if l < 2:
            xb = XF[p % 2]; d = g1[(l + 1, p, 0)].g - 2
            e2 = max(e, g1[(l + 1, p - 2, 6)].g + 1 if p >= 2 else e)
        else: xb = HA(p % 7); d = min(NG - 1, e + 10); e2 = e
        for j in range(4):
            t = TM[j % 2]
            V(valu(f"v_mul_f32 v{t}, v{XE_(p)+j}, v{Yr(p,0)+j}", vr(t), vr(XE_(p) + j) + vr(Yr(p, 0) + j), wv=('t0', l, p, j), ev={f"v{XE_(p)+j}": ('x0', p), f"v{Yr(p,0)+j}": ('y', p, 0, 4 * l + 4)}), e, d)
            V(valu(f"v_mul_f32 v{t+1}, v{XO_(p)+j}, v{Yr(p,1)+j}", vr(t + 1), vr(XO_(p) + j) + vr(Yr(p, 1) + j), wv=('t1', l, p, j), ev={f"v{XO_(p)+j}": ('x0', p), f"v{Yr(p,1)+j}": ('y', p, 1, 4 * l + 4)}), e, d)
            V(valu(f"v_cvt_pk_bf16_f32 v{xb+j}, v{t}, v{t+1}", vr(xb + j), vr(t, 2), nb=8, wv=('x', l + 1, p), ev={f"v{t}": ('t0', l, p, j), f"v{t+1}": ('t1', l, p, j)}), e2, d)
        if l == 2:
            s_ = Op(f"buffer_store_dwordx4 v[{xb}:{xb+3}], v{SO}, s[{sO}:{sO+3}], 0 offen offset:{64*p}" + (f" {C['saux']}" if C['saux'] else ""), 'st', rd=vr(xb, 4) + vr(SO) + srd(sO))
            s_.ev = {q: ('x', 3, p) for q in vr(xb, 4)}; s_.after = vq[-1]; stores.append(s_)
    unp = {}
    if MA:
        for p in range(13): unpack(p); unp[p] = vq[:]; del vq[:]
        hproc(0)
    else:
        for p in range(12): unpack(p)
        hproc(0); unpack(12)
    for l in range(3):
        for p in range(13): xproc(l, p)
        if l < 2: hproc(l + 1)
        if l == 1:
            e = rd[g1[(2, 12, 5)].g].pg + 1; d = rd[g2[(2, 6, 0, 0)].g].pg - 1
            V(valu(f"v_add_u32 v{VR0}, {U4}, v{UR}", vr(VR0), vr(UR), nb=8, wv='far'), e, d)
            V(valu(f"v_add_u32 v{VR1}, {U4}, v{UR8}", vr(VR1), vr(UR8), nb=8, wv='far'), e, d)
    for r in rd:
        if getattr(r, 'far', False): r.ev = {r.rd[0]: 'far'}
        elif r.rd[0] in vr(VR0, 2): r.ev = {r.rd[0]: None}
    for i in range(1, len(vq)): vq[i].e = max(vq[i].e, vq[i - 1].e)
    nxt = INF; cnt = 0
    for o in reversed(vq):
        d = min(o.d, nxt)
        if d == nxt:
            cnt += 1
            if cnt > C['vcap'] and d > o.e: d -= 1; cnt = 1
        else: cnt = 1
        o.late = d; nxt = d
        assert o.late >= o.e or o.e >= NG - 1, (o.text, o.e, o.late)
    if st: em.raw(f"s_memtime s[{STAMP0}:{STAMP0+1}]"); em.raw("s_memrealtime s[98:99]")
    enc = C.get('enc')
    em.raw("s_load_dwordx4 s[4:7], s[0:1], 0"); em.raw("s_load_dwordx4 s[8:11], s[0:1], 16")
    em.raw(f"s_getpc_b64 s[64:65]\nL_pc:\ns_mov_b32 s66, L_end-L_pc\ns_mov_b32 s67, 0x20000\ns_bfe_u32 s68, s2, 0x30003\ns_lshl_b32 s68, s68, 7\nv_lshlrev_b32 v19, 10, v0")
    em.emit(Op(f"buffer_load_dword v19, v19, s[64:67], s68 offen", 'vld', rd=['v19'] + srd(64), wr=['v19']))
    sF = 72; sMa, sMb, sD, sI, sSa, sSb = 62, 63, 69, 70, 71, 76; vF = 15
    P(f"""s_lshr_b32 s14, s2, 8
s_cbranch_scc1 L_end
v_lshrrev_b32 v2, 6, v0
v_and_b32 v1, 63, v0
v_readfirstlane_b32 s{sW}, v2
v_lshrrev_b32 v3, 3, v1
v_lshlrev_b32 v{L16}, 4, v1
v_and_b32 v5, 6, v3
v_lshlrev_b32 v5, 4, v5
v_xor_b32 v5, v5, v{L16}
s_movk_i32 s14, 1536
v_mad_u32_u24 v{XD}, v3, s14, v5
v_lshrrev_b32 v4, 5, v1
s_movk_i32 s14, 6656
v_mad_u32_u24 v{VD}, v4, s14, v{XD}
s_and_b32 s{sT0}, s{sW}, 1
s_lshr_b32 s{sT1}, s{sW}, 1
s_lshl_b32 s{sW1k}, s{sW}, 10
s_lshl_b32 s{sWV}, s{sT1}, 12
s_add_u32 s{sWV}, s{sWV}, s{sW1k}
s_mul_i32 s14, s14, s{sT0}
s_mul_i32 s{sL6b}, s{sT1}, 896
s_add_u32 s14, s14, s{sL6b}
v_add_u32 v{VD}, s14, v{VD}
s_lshl2_add_u32 s15, s2, s{sW}
s_mulk_i32 s15, 13312
s_movk_i32 s{sX+2}, 13312
s_mov_b32 s{sX+3}, s67
s_mov_b32 s{sV+2}, 259584
s_mov_b32 s{sV+3}, s67
s_mov_b64 s[{sP+2}:{sP+3}], s[{sV+2}:{sV+3}]
s_lshr_b32 s14, s2, 4
s_lshl_b32 s14, s14, 7
s_lshl_b32 s{sT}, s{sT1}, 17
s_add_u32 s14, s14, s{sT}
v_lshlrev_b32 v{PF1}, 11, v1
s_add_u32 s{sMb}, s{sWV}, {U4}
s_movk_i32 s{sD}, 4096
s_movk_i32 s{sI}, 8192
s_movk_i32 s{sSa}, 0
s_movk_i32 s{sSb}, 896
s_bitcmp1_b32 s2, 3
s_cmovk_i32 s{sD}, 2048
s_cmovk_i32 s{sI}, 12288
s_cmovk_i32 s{sSb}, 26624
s_cselect_b32 s{sMa}, s{sMb}, s{sW1k}
s_cselect_b64 s[{sF+2}:{sF+3}], s[{sV+2}:{sV+3}], s[{sX+2}:{sX+3}]
s_cselect_b64 vcc, -1, 0
v_cndmask_b32 v{vF}, v{XD}, v{VD}, vcc
s_cmp_eq_u32 s{sT0}, 1""")
    em.raw("s_waitcnt lgkmcnt(0)")
    if st: em.raw(f"s_memtime s[{STAMP0+2}:{STAMP0+3}]")
    P(f"""s_cselect_b64 s[{sP}:{sP+1}], s[6:7], s[8:9]
s_add_u32 s{sX}, s4, s15
s_addc_u32 s{sX+1}, s5, 0
s_mov_b64 s[{sV}:{sV+1}], s[8:9]
s_mov_b64 s[{sF}:{sF+1}], s[{sX}:{sX+1}]
s_cbranch_vccz L_loop
s_mov_b64 s[{sF}:{sF+1}], s[8:9]""")
    em.emit(Op(f"buffer_load_dword v18, v{PF1}, s[{sP}:{sP+3}], s14 offen", 'vld', rd=vr(PF1) + srd(sP), wr=['v18']))
    xa = (" " + C['xaux']) if C['xaux'] else ""
    em.raw(f"""L_loop:
s_mov_b32 m0, s{sMa}
s_add_u32 s{sMb}, s{sMa}, s{sD}
buffer_load_dwordx4 v{vF}, s[{sF}:{sF+3}], s{sSa} offen{xa} lds
s_mov_b32 m0, s{sMb}
s_add_u32 s{sMa}, s{sMa}, s{sI}
buffer_load_dwordx4 v{vF}, s[{sF}:{sF+3}], s{sSb} offen{xa} lds
s_addk_i32 s{sSb}, 128
s_addk_i32 s{sSa}, 128
s_cmpk_lg_i32 s{sSa}, 768
s_cbranch_scc1 L_loop""")
    todo = list(pieces)
    nis = [0]
    def issue_now(q, silent=False):
        n0 = len(em.out)
        for o in q.pre + q.ops: em.emit(o)
        if silent: del em.out[n0:]
        nis[0] += len(q.ops)
        if st and ['P', nis[0]] in C['stamps']:
            i = C['stamps'].index(['P', nis[0]]); em.raw(f"s_memtime s[{STAMP0+6+2*i}:{STAMP0+7+2*i}]")
        q.issued = em.gap; todo.remove(q)
    for a in range(6):
        for q in ([xp[a], xp[7 + a]] if MA else [vp[(0, a, 0)], vp[(0, a, 1)]]): issue_now(q, True)
    P(f"""s_lshl_b32 s{sWp}, s{sT0}, 10
s_mul_i32 s{sL6a}, s{sT1}, {26624-896}
s_add_u32 s{sL6a}, s{sL6a}, 768
s_sub_u32 s{sL6b}, {53248+768}, s{sL6b}
s_mul_i32 s{sW1664}, s{sW}, 1664
s_add_u32 s{sT}, s{sW1664}, 79872
s_mov_b32 s{sVS[0]}, 0
s_mov_b32 s{sVS[1]}, 26624
s_mov_b32 s{sVS[2]}, 53248""")
    em.raw("s_load_dwordx2 s[12:13], s[0:1], 32")
    if st: em.raw("s_load_dwordx2 s[60:61], s[0:1], 48")
    P(f"""s_mov_b32 s{sU}, s6
s_mov_b32 s{sU+1}, s7
s_mov_b32 s{sU+2}, 53248
s_mov_b32 s{sU+3}, 0x20000
s_add_u32 s{sU4}, s6, {212992-U4}
s_addc_u32 s{sU4+1}, s7, 0
s_mov_b32 s{sU4+2}, {259584-212992+U4}
s_mov_b32 s{sU4+3}, 0x20000
s_mov_b32 s{sB}, s10
s_mov_b32 s{sB+1}, s11
s_mov_b32 s{sB+2}, 2496
s_mov_b32 s{sB+3}, 0x20000
s_mov_b32 s{sO+2}, 13312
s_mov_b32 s{sO+3}, 0x20000
s_mov_b32 s{sMask}, 0xffff0000
s_mov_b32 s{sLo}, -1
s_mov_b32 s{sLo+1}, 0
v_and_b32 v2, 15, v1
v_lshrrev_b32 v3, 4, v1
v_lshlrev_b32 v6, 4, v3
v_mul_u32_u24 v7, 416, v2
v_add_u32 v{UR}, v7, v6
v_and_b32 v13, 1, v3
v_lshl_add_u32 v7, v13, 3, v7
v_add_u32 v{UR8}, 192, v7
v_mul_u32_u24 v7, 832, v2
v_add_u32 v{SO}, v7, v6
v_xor_b32 v13, 32, v6
v_cmp_gt_u32 vcc, 8, v2
v_cndmask_b32 v13, v13, v{SO}, vcc
v_add_u32 v{T6R}, {V12B}, v13
v_mul_u32_u24 v7, 832, v3
v_lshl_add_u32 v7, v2, 2, v7
v_add_u32 v{PA}, {BIASB}, v7
v_lshrrev_b32 v4, 3, v2
v_and_b32 v5, 3, v2
v_lshl_add_u32 v7, v4, 2, v5
v_lshlrev_b32 v7, 7, v7
v_and_b32 v13, 4, v2
v_lshl_add_u32 v7, v13, 8, v7
v_and_b32 v13, 2, v2
v_lshlrev_b32 v13, 4, v13
v_lshl_or_b32 v13, v4, 6, v13
v_xor_b32 v13, v13, v6
v_add_u32 v13, {VB}, v13
v_add_u32 v{VR0}, v7, v13
v_xor_b32 v{VR1}, 64, v{VR0}
v_subrev_u32 v{VRB}, {VB-U4}, v{VR0}
v_subrev_u32 v{VRB+1}, {VB-U4}, v{VR1}
v_lshrrev_b32 v7, 1, v2
v_lshl_add_u32 v7, v7, 7, s{sW1k}
v_and_b32 v5, 1, v2
v_and_b32 v13, 12, v2
v_lshlrev_b32 v13, 3, v13
v_xor_b32 v13, v13, v6
v_lshlrev_b32 v14, 6, v5
v_xor_b32 v13, v13, v14
v_add_u32 v7, v7, v13
v_mul_u32_u24 v14, 49152, v5
v_add_u32 v{XA0}, v7, v14
v_lshlrev_b32 v14, 12, v5
v_sub_u32 v{XAE}, v7, v14
v_add_u32 v{XAE}, 4096, v{XAE}
v_xor_b32 v7, 64, v7
v_add_u32 v{XAO}, v7, v14
v_mov_b32 v7, 0x3f80""")
    for l in range(3):
        P(f"""v_cmp_eq_u32 vcc, {l}, v3
v_cndmask_b32 v13, 0, v7, vcc
v_accvgpr_write_b32 a{BG(l)+1}, 0
v_accvgpr_write_b32 a{BG(l)+4}, v13
v_lshlrev_b32 v13, 16, v13
v_accvgpr_write_b32 a{BG(l)+5}, 0
v_accvgpr_write_b32 a{BG(l)}, v13""")
    em.raw("s_waitcnt lgkmcnt(0)")
    P(f"s_add_u32 s{sO}, s12, s15\ns_addc_u32 s{sO+1}, s13, 0")
    em.raw('; SPLIT', cost=0, nb=0, ws=0)
    def xread(r):
        for q in r.pieces: r.needs.append(q.ops[-1])
        em.emit(r)
    if MA:
        issue_now(xp[6]); issue_now(bp)
        prev = None
        for p in list(range(1, 12)) + [0, 12, None]:
            if p is not None:
                for r in xr2[p]: xread(r)
            if nis[0] < C['npro']: issue_now(todo[0])
            if prev is not None:
                for o in unp[prev]: em.emit(o)
            prev = p
    else:
        for q in [q for q in todo if not q.private and q.name[0] != 'u' and (q is bp or q.name[1] == 0)]: issue_now(q)
    while nis[0] < C['npro']:
        q = todo[0]; assert not q.war; issue_now(q)
    freed = 0; slack = []
    def barop(g):
        nd = bar_needs(g)
        for q in nd: assert q.issued is not None, f"piece {q.name} not issued at barrier {g} (need {q.need})"
        return Op("s_barrier", 'bar', needs=[q.ops[-1] for q in nd], cost=2), nd
    def elig(q, g):
        if q.est > g: return False
        for o in q.war:
            for r in o.readers:
                if r.seq is None or r.seq >= (em.lg_done if o.private else freed): return False
        return True
    stamps = {}
    if st:
        for i, key in enumerate(C['stamps']):
            if key[0] != 'P': stamps[start[tuple(key)]] = f"s_memtime s[{STAMP0+6+2*i}:{STAMP0+7+2*i}]"
    if isinstance(enc, list): stamps[start[tuple(enc)]] = "s_memrealtime s[96:97]"
    cur = None; curq = []; lastd = -INF; vi = 0; fill = []; T = 0; tl = {}
    for g in range(-1, NG):
        em.gap = g; o0 = len(em.out); shadow = g >= 0
        if g >= 0:
            if g in stamps: em.raw(stamps[g], nb=8)
            em.emit(mf[g])
        om = len(em.out)
        if g in bars or g == -1:
            b, nd = barop(g)
            em.emit(b); freed = em.lg_done; shadow = False
            slack += [(g - q.issued, q.name) for q in nd if q.issued >= 0]
            if g == -1 and enc == 'bar0': em.raw("s_memrealtime s[96:97]")
            if g == -1 and st: em.raw(f"s_memtime s[{STAMP0+4}:{STAMP0+5}]")
        lg, vm = em.need(mf[g + 1]) if 0 <= g < NG - 1 else (0, 0)
        if g + 1 in bars:
            vm = em.need(barop(g + 1)[0])[1]
            if g + 2 < NG: lg = max(lg, em.need(mf[g + 2])[0])
            lg = max(lg, em.lg_done + 1) if em.lg_done < len(em.lg) and em.lg[em.lg_done].gap <= g - em.lg_slack else lg
        if lg or vm: em.wait(lg, vm); shadow = False
        sp = C['sp0'] if g < G20 + 16 else C['sp']
        if cur is None:
            el = [q for q in todo if elig(q, g)]
            if el: cur = el[0]; curq = list(cur.pre) + list(cur.ops); todo.remove(cur)
        if cur and curq[0].kind == 'salu' and (shadow or g < G20): em.emit(curq.pop(0))
        for r in rgap[g + 1]:
            for q in r.pieces:
                if q.private: r.needs.append(q.ops[-1])
            em.emit(r)
        nf = len(rgap[g + 1]) + (2 if g in bars else 0)
        if cur and curq[0].kind == 'dma' and g - lastd >= sp:
            em.emit(curq.pop(0)); lastd = g; nf += 2
            if not curq: cur.issued = g; cur = None
        elif stores and stores[0].after.gap is not None:
            em.emit(stores.pop(0)); nf += 4
        while vi < len(vq) and (g == NG - 1 or (vq[vi].e <= g and (nf < 2 or vq[vi].late <= g or (g < G20 and nf < 3)))):
            em.emit(vq[vi]); vi += 1; nf += 1
            if g == NG - 1 and stores and stores[0].after.gap is not None: em.emit(stores.pop(0))
        c = sum(x[2] for x in em.out[o0:]) - (1 if g >= 0 and len(em.out) > om and em.out[om][0].startswith('s_') and not em.out[om][0].startswith('s_barrier') else 0)
        fill.append(c); tl[g] = T; T += max(4, c)
    assert not todo and cur is None and not stores and vi == len(vq)
    if st:
        ns = 3 + len(C['stamps'])
        em.raw(f"s_memtime s[{STAMP0+2*ns}:{STAMP0+2*ns+1}]"); ns += 1
        em.raw("s_waitcnt vmcnt(0)")
        em.raw(f"s_memtime s[{STAMP0+2*ns}:{STAMP0+2*ns+1}]"); ns += 1
        assert STAMP0 + 2 * ns <= 98
        em.raw("s_memrealtime s[100:101]")
        em.raw("s_waitcnt lgkmcnt(0)")
        em.raw(f"s_mov_b32 s16, s60\ns_mov_b32 s17, s61\ns_mov_b32 s18, 65536\ns_mov_b32 s19, 0x20000")
        em.raw(f"s_lshl_b32 s20, s2, 2\ns_add_u32 s20, s20, s{sW}\ns_lshl_b32 s20, s20, 6\nv_mov_b32 v1, s20\ns_mov_b64 exec, 1")
        for i in range(12): em.raw(f"v_mov_b32 v0, s{STAMP0+2*i}\ns_nop 1\nbuffer_store_dword v0, v1, s[16:19], 0 offen offset:{4*i}\ns_nop 1")
    if enc:
        if enc == 'end': em.raw("s_memrealtime s[96:97]")
        em.raw("s_waitcnt vmcnt(0)")
        if enc == 'drain': em.raw("s_memrealtime s[96:97]")
        em.raw("s_waitcnt lgkmcnt(0)\nL_sp:\ns_memrealtime s[100:101]\ns_waitcnt lgkmcnt(0)\ns_sub_u32 s100, s100, s96\ns_cmp_lt_u32 s100, 2000\ns_cbranch_scc1 L_sp")
    if C['verbose']:
        print("slots", T, "waits", em.nwait, "nops", em.nnop, "bytes", sum(x[3] for x in em.out), "bars", barl)
        print("phase slots", {k: tl[v] for k, v in start.items() if k[2] == 0 and k[0] == 'G2'})
        print("fill", "".join(str(min(c, 9)) for c in fill))
        print("slack", [(s_, n) for s_, n in slack])
    return [(t, gap) for (t, gap, c, nb) in em.out]

def compose(kw):
    ab = kw.pop('B', None)
    A = gen(**kw)
    L = ["; DCN-v2 cross network, generated by gen/v2.py", "; @launch grid=(256,1,1) block=(256,1,1) lds=163840",
         '.amdgcn_target "amdgcn-amd-amdhsa--gfx950"', ".text", f".globl {NAME}_kernel", ".p2align 8", f".type {NAME}_kernel,@function", f"{NAME}_kernel:"]
    if ab is None: L += [t for t, g in A]
    else:
        Bv = gen(**{**kw, **ab, 'mode': 'B'})
        sp = [t for t, g in A].index('; SPLIT')
        assert A[:sp] == Bv[:sp]
        k = 0
        while A[-1 - k] == Bv[-1 - k]: k += 1
        while not A[-k][0].startswith('v_mfma'): k -= 1
        k -= 1
        print("merge at gap", A[-k][1])
        L += [t for t, g in A[:sp]] + ["s_bitcmp1_b32 s2, 3", "s_cbranch_scc1 L_B"] + [t for t, g in A[sp:-k]] + ["s_branch L_M", "L_B:"]
        L += [t for t, g in Bv[sp:-k]] + ["L_M:"] + [t for t, g in A[-k:]]
    L.append("L_end:\ns_endpgm")
    L.append(f'.section .rodata,"a"\n.p2align 6\n.amdhsa_kernel {NAME}_kernel\n  .amdhsa_next_free_vgpr 512\n  .amdhsa_next_free_sgpr 102\n  .amdhsa_accum_offset 256\n  .amdhsa_group_segment_fixed_size 0\n  .amdhsa_kernarg_size 56\n  .amdhsa_user_sgpr_count 2\n  .amdhsa_user_sgpr_kernarg_segment_ptr 1\n  .amdhsa_system_sgpr_workgroup_id_x 1\n.end_amdhsa_kernel')
    return "\n".join(L) + "\n"

if __name__ == "__main__":
    kw = json.loads(sys.argv[2]) if len(sys.argv) > 2 else {}
    kw['verbose'] = True
    open(sys.argv[1], "w").write(compose(kw))
```

```python
import sys, json
from sched import *
from fast import Pro, valu, salu, srd, NAME
U4 = 53248; VB = 77824; L6B = 126976; V12B = 139264; BIASB = 152576
Yr = lambda p, t: 8 * p + 4 * t
XE_ = lambda p: 104 + 8 * p
XO_ = lambda p: 108 + 8 * p
HA = lambda i: 208 + 4 * i
XF = [236, 240]; TM = [244, 246]
UR, UR8, VR0, VR1, T6R, L16, VD, SO = range(248, 256)
XD, XA0, XAE, XAO, PA, PF1, PF2 = 8, 9, 10, 11, 12, 16, 17
PA = 243; VRB = 20
sW = 3; sX = 16; sO = 20; sV = 24; sU = 28; sU4 = 32; sB = 36; sP = 40
sVS = [44, 45, 46]; sW1k = 47; sWV = 48; sWp = 49; sW1664 = 50; sL6a = 51; sL6b = 52; sT = 53; sMask = 54; sLo = 56; sT0 = 58; sT1 = 59
STAMP0 = 78
DEF = dict(stamps=None, D=16, D0=8, NA=18, slack=7, sp=3, sp0=1, npro=12, lag=2, xaux="", saux="sc0 sc1", waux="", pf=True,
           bar0=14, bar0off=0, baroff=0, barper=30, vcap=2, mdist=3, u4est=4, verbose=False, pf2at=10, last_bar=20, mode='A', Dx=5)

class Piece:
    def __init__(s, name, region, pre, op, private=False):
        s.name = name; s.region = region; s.pre = pre; s.ops = op if isinstance(op, list) else [op]; s.private = private
        s.readers = []; s.need = INF; s.est = -INF; s.issued = None; s.war = []
def dma(voff, s, soff, off, aux=""):
    so = "0" if soff is None else soff
    return Op(f"buffer_load_dwordx4 v{voff}, s[{s}:{s+3}], {so} offen" + (f" offset:{off}" if off else "") + (f" {aux}" if aux else "") + " lds",
              'dma', rd=[f"v{voff}", 'm0'] + srd(s) + ([] if soff is None else [soff]))
def m0(base, imm):
    assert imm >= 0
    if imm == 0: return salu(f"s_mov_b32 m0, s{base}", wr=['m0'], rd=[f"s{base}"])
    return salu(f"s_add_u32 m0, s{base}, {imm}", wr=['m0'], rd=[f"s{base}"], nb=8)
def dsr(p, d, n, addr, off, wv, pieces):
    mn = {4: 'ds_read_b128', 2: 'ds_read_b64'}[n]
    assert 0 <= off < 65536
    o = Op(f"{mn} {p}[{d}:{d+n-1}], v{addr} offset:{off}", 'dsr', rd=[f"v{addr}"], wr=[f"{p}{d+i}" for i in range(n)])
    o.wv = wv; o.pieces = pieces
    for q in pieces: q.readers.append(o)
    return o

def gen(**kw):
    C = dict(DEF); C.update(kw)
    NA = C['NA']; REM = lambda p: 4 * NA + 6 * p; HB = lambda s: 4 * NA + 78 + 4 * s; BG = lambda l: 4 * NA + 90 + 6 * l
    assert BG(3) <= 256
    em = Emitter(lg_slack=C['slack']); P = Pro(em); W = C['waux']
    st = C['stamps'] is not None
    MA = C['mode'] == 'A'; XA = lambda p: BG(3) + 4 * p
    xslot = lambda c: 2 * c if c <= 6 else 2 * (c - 7) + 1
    xp = {c: Piece(('x', c), [(4096 * xslot(c), 4096 * xslot(c) + 4096)], [m0(sW1k, 4096 * xslot(c) - 128 * c)], dma(XD, sX, None, 128 * c, C['xaux']), True) for c in range(13)}
    up = {}
    for k in range(64):
        if k < 52:
            a = 4096 * (k % 13); pre = []
            if k % 13 == 0 and k:
                pre = [salu(f"s_add_u32 s{sU}, s{sU}, 53248\ns_addc_u32 s{sU+1}, s{sU+1}, 0", wr=[f"s{sU}", f"s{sU+1}"], nb=12)]
                pre[0].cost = 2; pre[0].wv = k // 13
            up[k] = Piece(('u', k), [(a, a + 4096)], pre + [m0(sW1k, a)], dma(L16, sU, 'm0', 0, W))
            up[k].ops[0].ev = {f"s{sU}": k // 13 or None}
        else:
            a = U4 + 4096 * (k - 52)
            up[k] = Piece(('u', k), [(a, a + 4096)], [m0(sW1k, a)], dma(L16, sU4, 'm0', 0, W))
    vp = {}; l6 = {}; v12 = {}
    def vsl(l, a):
        if l == 0: return VB + 12288 * (a - 2)
        return VB + 12288 * ((6 * l + a + 2) % 4)
    for l in range(3):
        for a in range(6):
            sl = vsl(l, a)
            for s in range(3):
                pre = [salu(f"s_mov_b32 s{sVS[s]}, {86528*l + 26624*s}", wr=[f"s{sVS[s]}"], nb=8)] if (a == 0 and l > 0) else []
                vp[(l, a, s)] = Piece(('v', l, a, s), [(sl + 2048 * s, sl + 2048 * s + 2048), (sl + 6144 + 2048 * s, sl + 6144 + 2048 * s + 2048)],
                                      pre + [m0(sWV, sl + 2048 * s - 128 * a)], dma(VD, sV, f"s{sVS[s]}", 128 * a, W))
                if pre: pre[0].wv = l
                vp[(l, a, s)].ops[0].ev = {f"s{sVS[s]}": l or None}
        b = L6B + 6144 * (l % 2)
        adv = lambda r: [salu(f"s_add_u32 s{r}, s{r}, 86528", wr=[f"s{r}"], nb=8)] if l else []
        l6[(l, 0)] = Piece(('l6', l, 0), [(b, b + 4096)], adv(sL6a) + [m0(sW1k, b)], dma(VD, sV, f"s{sL6a}", 0, W))
        l6[(l, 1)] = Piece(('l6', l, 1), [(b + 4096, b + 6144)], adv(sL6b) + [m0(sWp, b + 4096)], dma(VD, sV, f"s{sL6b}", 0, W))
        b = V12B + 6656 * (l % 2)
        v12[l] = Piece(('v12', l), [(b, b + 6656)], adv(sT) + [m0(sW1664, b)], [dma(L16, sV, f"s{sT}", 0, W), dma(L16, sV, f"s{sT}", 640, W)])
    bp = Piece(('b',), [(BIASB, BIASB + 4096)], [m0(sW1k, BIASB)], dma(L16, sB, f"s{sW1k}", 0, W))
    seq = [('G1', 0, p) for p in range(13)]
    lag = C['lag']
    for l in range(3):
        seq.append(('G2', l, (0, 1)))
        done = 0
        for p in range(1, 13):
            if p > 1: seq.append(('G2', l, (p,)))
            if l < 2 and p - lag >= 0: seq.append(('G1', l + 1, p - lag)); done = p - lag + 1
        if l < 2: seq += [('G1', l + 1, p) for p in range(done, 13)]
    mf = []; rd = []; g1 = {}; g2 = {}; start = {}; ring = [0]
    def rslot():
        r = 4 * (ring[0] % NA); ring[0] += 1; return r
    def mfma(d, a, bp_, b, c, wv, ev):
        cs = c if isinstance(c, str) else rng('v', d, 4)
        cr = [] if isinstance(c, str) else vr(d, 4)
        br = [f"{bp_}{b+i}" for i in range(4)]
        m = Op(f"v_mfma_f32_16x16x32_bf16 {rng('v', d, 4)}, a[{a}:{a+3}], {bp_}[{b}:{b+3}], {cs}", 'mfma16', rd=ar(a, 4) + br + cr, wr=vr(d, 4), srcc=cr)
        m.wv = wv; m.ev = ev; m.g = len(mf); mf.append(m); return m
    for (kd, l, p) in seq:
        start[(kd, l, p if kd == 'G1' else p[0])] = len(mf)
        if kd == 'G1':
            xb = XO_(p) if l == 0 else XF[p % 2]; xk = 'v'
            if l == 0 and MA: xb = XA(p); xk = 'a'
            for i in range(7):
                a = rslot(); s, t = i >> 1, i & 1
                if i == 6: r = dsr('a', a, 4, T6R, 6656 * (l % 2) + 64 * p, ('V', l, p, i), [v12[l]])
                else:
                    c, h = (p >> 1, p & 1) if t == 0 else (6 + ((p + 1) >> 1), (p + 1) & 1)
                    if c == 6: base = L6B + 6144 * (l % 2); pc = l6[(l, s >> 1)]
                    else:
                        aa = c if c < 6 else c - 7
                        base = vsl(l, aa) + (6144 if c > 6 else 0); pc = vp[(l, aa, s)]
                    if base < VB: r = dsr('a', a, 4, VRB + h, base + 2048 * s - U4, ('V', l, p, i), [pc])
                    else: r = dsr('a', a, 4, VR1 if h else VR0, base + 2048 * s - VB, ('V', l, p, i), [pc])
                ev = {q: ('V', l, p, i) for q in ar(a, 4)}; ev.update({f'{xk}{xb+z}': ('x', l, p) for z in range(4)})
                if p: ev.update({q: ('h', l, i, p) for q in vr(HA(i), 4)})
                g1[(l, p, i)] = mfma(HA(i), a, xk, xb, None if p else "0", ('h', l, i, p + 1), ev); rd.append(r)
        else:
            for s in range(4):
                for b in p:
                    B = 13 * l + b; lo = 6656 * B
                    pcs = [up[k] for k in range(lo // 4096, (lo + 6655) // 4096 + 1)]
                    far = B >= 32
                    off = lo - 212992 if far else lo % 53248
                    for t in range(2):
                        first = l == 0 and s == 0
                        if s < 3:
                            a = rslot(); r = dsr('a', a, 4, VR0 if far else UR, off + 208 * t + 64 * s, ('U', l, b, t, s), pcs)
                            ev = {q: ('U', l, b, t, s) for q in ar(a, 4)}; hb = HB(s); ev.update({q: ('hb', l, s) for q in ar(hb, 4)})
                        else:
                            r = dsr('a', REM(b) + 4 * t, 2, VR1 if far else UR8, off + 208 * t, ('U', l, b, t, s), pcs)
                            a = REM(b) + 2 * t; hb = BG(l) + 2 - 2 * t
                            ev = {q: ('U', l, b, t, s) for q in ar(REM(b) + 4 * t, 2)}; ev.update({q: ('P', b) for q in ar(REM(b) + 2, 2)})
                            ev.update({q: ('hb', l, 3) for q in ar(BG(l) + 2, 2)})
                        r.far = far
                        if not first: ev.update({q: ('y', b, t, 4 * l + s) for q in vr(Yr(b, t), 4)})
                        g2[(l, b, t, s)] = mfma(Yr(b, t), a, 'a', hb, "1.0" if first else None, ('y', b, t, 4 * l + s + 1), ev); rd.append(r)
    NG = len(mf)
    G20 = start[('G2', 0, 0)]
    def Dist(i): return C['D0'] if i < G20 + 16 else min(C['D'], C['D0'] + (i - G20 - 16) // 4)
    rgap = [[] for _ in range(NG + 1)]
    xr2 = {}; xlate = []
    for i, r in enumerate(rd):
        if i < G20 and i % 7 == 0:
            p = i // 7
            ad, off = (XA0, 0) if p == 0 else ((XAE, 4096 * (p - 1)) if p % 2 == 0 else (XAO, 4096 * (p - 1)))
            x = dsr('v', XO_(p), 4, ad, off, ('x', 0, p), [xp[p >> 1], xp[6 + ((p + 1) >> 1)]])
            if MA:
                xr2[p] = [x, dsr('a', XA(p), 4, ad, off, ('x', 0, p), x.pieces)]
                for z in xr2[p]: z.pg = -2
            else: x.pg = max(-1, i - C['Dx']); xlate.append(x)
        r.pg = max(-1, i - Dist(i)); rgap[r.pg + 1].append(r)
    for p in range(13):
        o = Op(f"ds_read2_b32 a[{REM(p)+2}:{REM(p)+3}], v{PA} offset0:{16*p} offset1:{16*p}", 'dsr', rd=vr(PA), wr=ar(REM(p) + 2, 2))
        o.wv = ('P', p); o.pieces = [bp]; bp.readers.append(o); o.pg = G20 - 40 + 3 * p if MA else -1
        if MA: rgap[o.pg + 1].append(o)
        else: rgap[0].insert(0, o)
    for x in xlate: rgap[x.pg + 1].append(x)
    pieces = list(xp.values()) + list(up.values()) + list(vp.values()) + list(l6.values()) + list(v12.values()) + [bp]
    for q in pieces: q.need = min((r.pg + 0.001 * rgap[r.pg + 1].index(r) if r.pg >= -1 else -2) for r in q.readers)
    pieces.sort(key=lambda q: q.need)
    ov = lambda a, b: any(x0 < y1 and y0 < x1 for (x0, x1) in a.region for (y0, y1) in b.region)
    for i, q in enumerate(pieces): q.war = [o for o in pieces[:i] if ov(o, q)]
    for k in range(52, 64): up[k].est = start[('G1', 2, C['u4est'])]
    bars = set()
    g = C['bar0off'] + C['bar0'] - C['D0'] - 1
    while g < G20 + C['baroff'] - 8: bars.add(g); g += C['bar0']
    if C.get('bars0') is not None: bars = set(C['bars0'])
    for l in range(2):
        g0 = start[('G2', l, 0)] + C['baroff']; n = round(195 / C['barper'])
        for i in range(n): bars.add(g0 + round(i * 195 / n))
    bars.add(start[('G2', 2, 0)] + C['baroff'])
    if C['last_bar'] is not None: bars.add(start[('G2', 2, 0)] + C['baroff'] + C['last_bar'])
    barl = sorted(bars)
    def bar_needs(g):
        nx = min([b for b in barl if b > g] + [NG])
        return [q for q in pieces if not q.private and g <= q.need < nx]
    vq = []
    md = C['mdist']
    def V(op, e, d): op.e = e; op.d = d; vq.append(op)
    def unpack(p):
        for j in range(4):
            e = g1[(0, p, 6)].g + 1; d = G20 + 10 + 8 * p
            V(valu(f"v_lshlrev_b32 v{XE_(p)+j}, 16, v{XO_(p)+j}", vr(XE_(p) + j), vr(XO_(p) + j), wv=('x0', p), ev={f"v{XO_(p)+j}": ('x', 0, p)}), e, d)
            V(valu(f"v_and_b32 v{XO_(p)+j}, s{sMask}, v{XO_(p)+j}", vr(XO_(p) + j), vr(XO_(p) + j), wv=('x0', p), ev={f"v{XO_(p)+j}": ('x', 0, p)}), e, d)
    def hproc(l):
        for s in range(3):
            e = g1[(l, 12, 2 * s + 1)].g + md; d = g2[(l, 0, 0, s)].g - 2
            for j in range(4):
                a, b = HA(2 * s) + j, HA(2 * s + 1) + j
                V(valu(f"v_cvt_pk_bf16_f32 v{a}, v{a}, v{b}", vr(a), vr(a) + vr(b), nb=8, wv=('hc',), ev={f"v{a}": ('h', l, 2 * s, 13), f"v{b}": ('h', l, 2 * s + 1, 13)}), e, d)
            for j in range(4):
                a = HA(2 * s) + j
                V(valu(f"v_accvgpr_write_b32 a{HB(s)+j}, v{a}", ar(HB(s) + j), vr(a), nb=8, wv=('hb', l, s), ev={f"v{a}": ('hc',)}), e, d)
        e = g1[(l, 12, 6)].g + md; d = g2[(l, 0, 0, 3)].g - 2; a = HA(6)
        for j in range(2): V(valu(f"v_cvt_pk_bf16_f32 v{a+2*j}, v{a+2*j}, v{a+2*j+1}", vr(a + 2 * j), vr(a + 2 * j, 2), nb=8, wv=('hc',), ev={q: ('h', l, 6, 13) for q in vr(a + 2 * j, 2)}), e, d)
        for j in range(2): V(valu(f"v_cndmask_b32_e64 v{a+2*j}, 0, v{a+2*j}, s[{sLo}:{sLo+1}]", vr(a + 2 * j), vr(a + 2 * j), nb=8, wv=('hc',)), e, d)
        for j in range(2): V(valu(f"v_accvgpr_write_b32 a{BG(l)+2+j}, v{a+2*j}", ar(BG(l) + 2 + j), vr(a + 2 * j), nb=8, wv=('hb', l, 3)), e, d)
    stores = []
    def xproc(l, p):
        e = g2[(l, p, 1, 3)].g + md
        if l < 2:
            xb = XF[p % 2]; d = g1[(l + 1, p, 0)].g - 2
            e2 = max(e, g1[(l + 1, p - 2, 6)].g + 1 if p >= 2 else e)
        else: xb = HA(p % 7); d = min(NG - 1, e + 10); e2 = e
        for j in range(4):
            t = TM[j % 2]
            V(valu(f"v_mul_f32 v{t}, v{XE_(p)+j}, v{Yr(p,0)+j}", vr(t), vr(XE_(p) + j) + vr(Yr(p, 0) + j), wv=('t0', l, p, j), ev={f"v{XE_(p)+j}": ('x0', p), f"v{Yr(p,0)+j}": ('y', p, 0, 4 * l + 4)}), e, d)
            V(valu(f"v_mul_f32 v{t+1}, v{XO_(p)+j}, v{Yr(p,1)+j}", vr(t + 1), vr(XO_(p) + j) + vr(Yr(p, 1) + j), wv=('t1', l, p, j), ev={f"v{XO_(p)+j}": ('x0', p), f"v{Yr(p,1)+j}": ('y', p, 1, 4 * l + 4)}), e, d)
            V(valu(f"v_cvt_pk_bf16_f32 v{xb+j}, v{t}, v{t+1}", vr(xb + j), vr(t, 2), nb=8, wv=('x', l + 1, p), ev={f"v{t}": ('t0', l, p, j), f"v{t+1}": ('t1', l, p, j)}), e2, d)
        if l == 2:
            s_ = Op(f"buffer_store_dwordx4 v[{xb}:{xb+3}], v{SO}, s[{sO}:{sO+3}], 0 offen offset:{64*p}" + (f" {C['saux']}" if C['saux'] else ""), 'st', rd=vr(xb, 4) + vr(SO) + srd(sO))
            s_.ev = {q: ('x', 3, p) for q in vr(xb, 4)}; s_.after = vq[-1]; stores.append(s_)
    unp = {}
    if MA:
        for p in range(13): unpack(p); unp[p] = vq[:]; del vq[:]
        hproc(0)
    else:
        for p in range(12): unpack(p)
        hproc(0); unpack(12)
    for l in range(3):
        for p in range(13): xproc(l, p)
        if l < 2: hproc(l + 1)
        if l == 1:
            e = rd[g1[(2, 12, 5)].g].pg + 1; d = rd[g2[(2, 6, 0, 0)].g].pg - 1
            V(valu(f"v_add_u32 v{VR0}, {U4}, v{UR}", vr(VR0), vr(UR), nb=8, wv='far'), e, d)
            V(valu(f"v_add_u32 v{VR1}, {U4}, v{UR8}", vr(VR1), vr(UR8), nb=8, wv='far'), e, d)
    for r in rd:
        if getattr(r, 'far', False): r.ev = {r.rd[0]: 'far'}
        elif r.rd[0] in vr(VR0, 2): r.ev = {r.rd[0]: None}
    for i in range(1, len(vq)): vq[i].e = max(vq[i].e, vq[i - 1].e)
    nxt = INF; cnt = 0
    for o in reversed(vq):
        d = min(o.d, nxt)
        if d == nxt:
            cnt += 1
            if cnt > C['vcap'] and d > o.e: d -= 1; cnt = 1
        else: cnt = 1
        o.late = d; nxt = d
        assert o.late >= o.e or o.e >= NG - 1, (o.text, o.e, o.late)
    if st: em.raw(f"s_memtime s[{STAMP0}:{STAMP0+1}]"); em.raw("s_memrealtime s[98:99]")
    enc = C.get('enc')
    em.raw("s_load_dwordx4 s[4:7], s[0:1], 0"); em.raw("s_load_dwordx4 s[8:11], s[0:1], 16")
    em.raw(f"s_getpc_b64 s[64:65]\nL_pc:\ns_mov_b32 s66, L_end-L_pc\ns_mov_b32 s67, 0x20000\ns_bfe_u32 s68, s2, 0x30003\ns_lshl_b32 s68, s68, 7\nv_lshlrev_b32 v19, 10, v0")
    em.emit(Op(f"buffer_load_dword v19, v19, s[64:67], s68 offen", 'vld', rd=['v19'] + srd(64), wr=['v19']))
    sF = 72; sMa, sMb, sD, sI, sSa, sSb = 62, 63, 69, 70, 71, 76; vF = 15
    P(f"""s_lshr_b32 s14, s2, 8
s_cbranch_scc1 L_end
v_lshrrev_b32 v2, 6, v0
v_and_b32 v1, 63, v0
v_readfirstlane_b32 s{sW}, v2
v_lshrrev_b32 v3, 3, v1
v_lshlrev_b32 v{L16}, 4, v1
v_and_b32 v5, 6, v3
v_lshlrev_b32 v5, 4, v5
v_xor_b32 v5, v5, v{L16}
s_movk_i32 s14, 1536
v_mad_u32_u24 v{XD}, v3, s14, v5
v_lshrrev_b32 v4, 5, v1
s_movk_i32 s14, 6656
v_mad_u32_u24 v{VD}, v4, s14, v{XD}
s_and_b32 s{sT0}, s{sW}, 1
s_lshr_b32 s{sT1}, s{sW}, 1
s_lshl_b32 s{sW1k}, s{sW}, 10
s_lshl_b32 s{sWV}, s{sT1}, 12
s_add_u32 s{sWV}, s{sWV}, s{sW1k}
s_mul_i32 s14, s14, s{sT0}
s_mul_i32 s{sL6b}, s{sT1}, 896
s_add_u32 s14, s14, s{sL6b}
v_add_u32 v{VD}, s14, v{VD}
s_lshl2_add_u32 s15, s2, s{sW}
s_mulk_i32 s15, 13312
s_movk_i32 s{sX+2}, 13312
s_mov_b32 s{sX+3}, s67
s_mov_b32 s{sV+2}, 259584
s_mov_b32 s{sV+3}, s67
s_mov_b64 s[{sP+2}:{sP+3}], s[{sV+2}:{sV+3}]
s_lshr_b32 s14, s2, 4
s_lshl_b32 s14, s14, 7
s_lshl_b32 s{sT}, s{sT1}, 17
s_add_u32 s14, s14, s{sT}
v_lshlrev_b32 v{PF1}, 11, v1
s_add_u32 s{sMb}, s{sWV}, {U4}
s_movk_i32 s{sD}, 4096
s_movk_i32 s{sI}, 8192
s_movk_i32 s{sSa}, 0
s_movk_i32 s{sSb}, 896
s_bitcmp1_b32 s2, 3
s_cmovk_i32 s{sD}, 2048
s_cmovk_i32 s{sI}, 12288
s_cmovk_i32 s{sSb}, 26624
s_cselect_b32 s{sMa}, s{sMb}, s{sW1k}
s_cselect_b64 s[{sF+2}:{sF+3}], s[{sV+2}:{sV+3}], s[{sX+2}:{sX+3}]
s_cselect_b64 vcc, -1, 0
v_cndmask_b32 v{vF}, v{XD}, v{VD}, vcc
s_cmp_eq_u32 s{sT0}, 1""")
    em.raw("s_waitcnt lgkmcnt(0)")
    if st: em.raw(f"s_memtime s[{STAMP0+2}:{STAMP0+3}]")
    P(f"""s_cselect_b64 s[{sP}:{sP+1}], s[6:7], s[8:9]
s_add_u32 s{sX}, s4, s15
s_addc_u32 s{sX+1}, s5, 0
s_mov_b64 s[{sV}:{sV+1}], s[8:9]
s_mov_b64 s[{sF}:{sF+1}], s[{sX}:{sX+1}]
s_cbranch_vccz L_loop
s_mov_b64 s[{sF}:{sF+1}], s[8:9]""")
    em.emit(Op(f"buffer_load_dword v18, v{PF1}, s[{sP}:{sP+3}], s14 offen", 'vld', rd=vr(PF1) + srd(sP), wr=['v18']))
    xa = (" " + C['xaux']) if C['xaux'] else ""
    em.raw(f"""L_loop:
s_mov_b32 m0, s{sMa}
s_add_u32 s{sMb}, s{sMa}, s{sD}
buffer_load_dwordx4 v{vF}, s[{sF}:{sF+3}], s{sSa} offen{xa} lds
s_mov_b32 m0, s{sMb}
s_add_u32 s{sMa}, s{sMa}, s{sI}
buffer_load_dwordx4 v{vF}, s[{sF}:{sF+3}], s{sSb} offen{xa} lds
s_addk_i32 s{sSb}, 128
s_addk_i32 s{sSa}, 128
s_cmpk_lg_i32 s{sSa}, 768
s_cbranch_scc1 L_loop""")
    todo = list(pieces)
    nis = [0]
    def issue_now(q, silent=False):
        n0 = len(em.out)
        for o in q.pre + q.ops: em.emit(o)
        if silent: del em.out[n0:]
        nis[0] += len(q.ops)
        if st and ['P', nis[0]] in C['stamps']:
            i = C['stamps'].index(['P', nis[0]]); em.raw(f"s_memtime s[{STAMP0+6+2*i}:{STAMP0+7+2*i}]")
        q.issued = em.gap; todo.remove(q)
    for a in range(6):
        for q in ([xp[a], xp[7 + a]] if MA else [vp[(0, a, 0)], vp[(0, a, 1)]]): issue_now(q, True)
    P(f"""s_lshl_b32 s{sWp}, s{sT0}, 10
s_mul_i32 s{sL6a}, s{sT1}, {26624-896}
s_add_u32 s{sL6a}, s{sL6a}, 768
s_sub_u32 s{sL6b}, {53248+768}, s{sL6b}
s_mul_i32 s{sW1664}, s{sW}, 1664
s_add_u32 s{sT}, s{sW1664}, 79872
s_mov_b32 s{sVS[0]}, 0
s_mov_b32 s{sVS[1]}, 26624
s_mov_b32 s{sVS[2]}, 53248""")
    em.raw("s_load_dwordx2 s[12:13], s[0:1], 32")
    if st: em.raw("s_load_dwordx2 s[60:61], s[0:1], 48")
    P(f"""s_mov_b32 s{sU}, s6
s_mov_b32 s{sU+1}, s7
s_mov_b32 s{sU+2}, 53248
s_mov_b32 s{sU+3}, 0x20000
s_add_u32 s{sU4}, s6, {212992-U4}
s_addc_u32 s{sU4+1}, s7, 0
s_mov_b32 s{sU4+2}, {259584-212992+U4}
s_mov_b32 s{sU4+3}, 0x20000
s_mov_b32 s{sB}, s10
s_mov_b32 s{sB+1}, s11
s_mov_b32 s{sB+2}, 2496
s_mov_b32 s{sB+3}, 0x20000
s_mov_b32 s{sO+2}, 13312
s_mov_b32 s{sO+3}, 0x20000
s_mov_b32 s{sMask}, 0xffff0000
s_mov_b32 s{sLo}, -1
s_mov_b32 s{sLo+1}, 0
v_and_b32 v2, 15, v1
v_lshrrev_b32 v3, 4, v1
v_lshlrev_b32 v6, 4, v3
v_mul_u32_u24 v7, 416, v2
v_add_u32 v{UR}, v7, v6
v_and_b32 v13, 1, v3
v_lshl_add_u32 v7, v13, 3, v7
v_add_u32 v{UR8}, 192, v7
v_mul_u32_u24 v7, 832, v2
v_add_u32 v{SO}, v7, v6
v_xor_b32 v13, 32, v6
v_cmp_gt_u32 vcc, 8, v2
v_cndmask_b32 v13, v13, v{SO}, vcc
v_add_u32 v{T6R}, {V12B}, v13
v_mul_u32_u24 v7, 832, v3
v_lshl_add_u32 v7, v2, 2, v7
v_add_u32 v{PA}, {BIASB}, v7
v_lshrrev_b32 v4, 3, v2
v_and_b32 v5, 3, v2
v_lshl_add_u32 v7, v4, 2, v5
v_lshlrev_b32 v7, 7, v7
v_and_b32 v13, 4, v2
v_lshl_add_u32 v7, v13, 8, v7
v_and_b32 v13, 2, v2
v_lshlrev_b32 v13, 4, v13
v_lshl_or_b32 v13, v4, 6, v13
v_xor_b32 v13, v13, v6
v_add_u32 v13, {VB}, v13
v_add_u32 v{VR0}, v7, v13
v_xor_b32 v{VR1}, 64, v{VR0}
v_subrev_u32 v{VRB}, {VB-U4}, v{VR0}
v_subrev_u32 v{VRB+1}, {VB-U4}, v{VR1}
v_lshrrev_b32 v7, 1, v2
v_lshl_add_u32 v7, v7, 7, s{sW1k}
v_and_b32 v5, 1, v2
v_and_b32 v13, 12, v2
v_lshlrev_b32 v13, 3, v13
v_xor_b32 v13, v13, v6
v_lshlrev_b32 v14, 6, v5
v_xor_b32 v13, v13, v14
v_add_u32 v7, v7, v13
v_mul_u32_u24 v14, 49152, v5
v_add_u32 v{XA0}, v7, v14
v_lshlrev_b32 v14, 12, v5
v_sub_u32 v{XAE}, v7, v14
v_add_u32 v{XAE}, 4096, v{XAE}
v_xor_b32 v7, 64, v7
v_add_u32 v{XAO}, v7, v14
v_mov_b32 v7, 0x3f80""")
    for l in range(3):
        P(f"""v_cmp_eq_u32 vcc, {l}, v3
v_cndmask_b32 v13, 0, v7, vcc
v_accvgpr_write_b32 a{BG(l)+1}, 0
v_accvgpr_write_b32 a{BG(l)+4}, v13
v_lshlrev_b32 v13, 16, v13
v_accvgpr_write_b32 a{BG(l)+5}, 0
v_accvgpr_write_b32 a{BG(l)}, v13""")
    em.raw("s_waitcnt lgkmcnt(0)")
    P(f"s_add_u32 s{sO}, s12, s15\ns_addc_u32 s{sO+1}, s13, 0")
    em.raw('; SPLIT', cost=0, nb=0, ws=0)
    if enc == 'split': em.raw("s_memrealtime s[96:97]\ns_waitcnt lgkmcnt(0)")
    def xread(r):
        for q in r.pieces: r.needs.append(q.ops[-1])
        em.emit(r)
    if MA:
        issue_now(xp[6]); issue_now(bp)
        prev = None
        for p in list(range(1, 12)) + [0, 12, None]:
            if p is not None:
                for r in xr2[p]: xread(r)
            if nis[0] < C['npro']: issue_now(todo[0])
            if prev is not None:
                for o in unp[prev]: em.emit(o)
            prev = p
    else:
        for q in [q for q in todo if not q.private and q.name[0] != 'u' and (q is bp or q.name[1] == 0)]: issue_now(q)
    while nis[0] < C['npro']:
        q = todo[0]; assert not q.war; issue_now(q)
    freed = 0; slack = []
    def barop(g):
        nd = bar_needs(g)
        for q in nd: assert q.issued is not None, f"piece {q.name} not issued at barrier {g} (need {q.need})"
        return Op("s_barrier", 'bar', needs=[q.ops[-1] for q in nd], cost=2), nd
    def elig(q, g):
        if q.est > g: return False
        for o in q.war:
            for r in o.readers:
                if r.seq is None or r.seq >= (em.lg_done if o.private else freed): return False
        return True
    stamps = {}
    if st:
        for i, key in enumerate(C['stamps']):
            if key[0] != 'P': stamps[start[tuple(key)]] = f"s_memtime s[{STAMP0+6+2*i}:{STAMP0+7+2*i}]"
    if isinstance(enc, list): stamps[start[tuple(enc)]] = "s_memrealtime s[96:97]"
    cur = None; curq = []; lastd = -INF; vi = 0; fill = []; T = 0; tl = {}
    for g in range(-1, NG):
        em.gap = g; o0 = len(em.out); shadow = g >= 0
        if g >= 0:
            if g in stamps: em.raw(stamps[g], nb=8)
            em.emit(mf[g])
        om = len(em.out)
        if g in bars or g == -1:
            b, nd = barop(g)
            em.emit(b); freed = em.lg_done; shadow = False
            slack += [(g - q.issued, q.name) for q in nd if q.issued >= 0]
            if g == -1 and enc == 'bar0': em.raw("s_memrealtime s[96:97]")
            if g == -1 and st: em.raw(f"s_memtime s[{STAMP0+4}:{STAMP0+5}]")
        lg, vm = em.need(mf[g + 1]) if 0 <= g < NG - 1 else (0, 0)
        if g + 1 in bars:
            vm = em.need(barop(g + 1)[0])[1]
            if g + 2 < NG: lg = max(lg, em.need(mf[g + 2])[0])
            lg = max(lg, em.lg_done + 1) if em.lg_done < len(em.lg) and em.lg[em.lg_done].gap <= g - em.lg_slack else lg
        if lg or vm: em.wait(lg, vm); shadow = False
        sp = C['sp0'] if g < G20 + 16 else C['sp']
        if cur is None:
            el = [q for q in todo if elig(q, g)]
            if el: cur = el[0]; curq = list(cur.pre) + list(cur.ops); todo.remove(cur)
        if cur and curq[0].kind == 'salu' and (shadow or g < G20): em.emit(curq.pop(0))
        for r in rgap[g + 1]:
            for q in r.pieces:
                if q.private: r.needs.append(q.ops[-1])
            em.emit(r)
        nf = len(rgap[g + 1]) + (2 if g in bars else 0)
        if cur and curq[0].kind == 'dma' and g - lastd >= sp:
            em.emit(curq.pop(0)); lastd = g; nf += 2
            if not curq: cur.issued = g; cur = None
        elif stores and stores[0].after.gap is not None:
            em.emit(stores.pop(0)); nf += 4
        while vi < len(vq) and (g == NG - 1 or (vq[vi].e <= g and (nf < 2 or vq[vi].late <= g or (g < G20 and nf < 3)))):
            em.emit(vq[vi]); vi += 1; nf += 1
            if g == NG - 1 and stores and stores[0].after.gap is not None: em.emit(stores.pop(0))
        c = sum(x[2] for x in em.out[o0:]) - (1 if g >= 0 and len(em.out) > om and em.out[om][0].startswith('s_') and not em.out[om][0].startswith('s_barrier') else 0)
        fill.append(c); tl[g] = T; T += max(4, c)
    assert not todo and cur is None and not stores and vi == len(vq)
    if st:
        ns = 3 + len(C['stamps'])
        em.raw(f"s_memtime s[{STAMP0+2*ns}:{STAMP0+2*ns+1}]"); ns += 1
        em.raw("s_waitcnt vmcnt(0)")
        em.raw(f"s_memtime s[{STAMP0+2*ns}:{STAMP0+2*ns+1}]"); ns += 1
        assert STAMP0 + 2 * ns <= 98
        em.raw("s_memrealtime s[100:101]")
        em.raw("s_waitcnt lgkmcnt(0)")
        em.raw(f"s_mov_b32 s16, s60\ns_mov_b32 s17, s61\ns_mov_b32 s18, 65536\ns_mov_b32 s19, 0x20000")
        em.raw(f"s_lshl_b32 s20, s2, 2\ns_add_u32 s20, s20, s{sW}\ns_lshl_b32 s20, s20, 6\nv_mov_b32 v1, s20\ns_mov_b64 exec, 1")
        for i in range(12): em.raw(f"v_mov_b32 v0, s{STAMP0+2*i}\ns_nop 1\nbuffer_store_dword v0, v1, s[16:19], 0 offen offset:{4*i}\ns_nop 1")
    if enc:
        if enc == 'end': em.raw("s_memrealtime s[96:97]")
        em.raw("s_waitcnt vmcnt(0)")
        if enc == 'drain': em.raw("s_memrealtime s[96:97]")
        em.raw("s_waitcnt lgkmcnt(0)\nL_sp:\ns_memrealtime s[100:101]\ns_waitcnt lgkmcnt(0)\ns_sub_u32 s100, s100, s96\ns_cmp_lt_u32 s100, 2000\ns_cbranch_scc1 L_sp")
    if C['verbose']:
        print("slots", T, "waits", em.nwait, "nops", em.nnop, "bytes", sum(x[3] for x in em.out), "bars", barl)
        print("phase slots", {k: tl[v] for k, v in start.items() if k[2] == 0 and k[0] == 'G2'})
        print("fill", "".join(str(min(c, 9)) for c in fill))
        print("slack", [(s_, n) for s_, n in slack])
    return [(t, gap) for (t, gap, c, nb) in em.out]

def compose(kw):
    ab = kw.pop('B', None)
    A = gen(**kw)
    L = ["; DCN-v2 cross network, generated by gen/v2.py", "; @launch grid=(256,1,1) block=(256,1,1) lds=163840",
         '.amdgcn_target "amdgcn-amd-amdhsa--gfx950"', ".text", f".globl {NAME}_kernel", ".p2align 8", f".type {NAME}_kernel,@function", f"{NAME}_kernel:"]
    if ab is None: L += [t for t, g in A]
    else:
        Bv = gen(**{**kw, **ab, 'mode': 'B'})
        sp = [t for t, g in A].index('; SPLIT')
        assert A[:sp] == Bv[:sp]
        k = 0
        while A[-1 - k] == Bv[-1 - k]: k += 1
        while not A[-k][0].startswith('v_mfma'): k -= 1
        k -= 1
        print("merge at gap", A[-k][1])
        L += [t for t, g in A[:sp]] + ["s_bitcmp1_b32 s2, 3", "s_cbranch_scc1 L_B"] + [t for t, g in A[sp:-k]] + ["s_branch L_M", "L_B:"]
        L += [t for t, g in Bv[sp:-k]] + ["L_M:"] + [t for t, g in A[-k:]]
    L.append("L_end:\ns_endpgm")
    L.append(f'.section .rodata,"a"\n.p2align 6\n.amdhsa_kernel {NAME}_kernel\n  .amdhsa_next_free_vgpr 512\n  .amdhsa_next_free_sgpr 102\n  .amdhsa_accum_offset 256\n  .amdhsa_group_segment_fixed_size 0\n  .amdhsa_kernarg_size 56\n  .amdhsa_user_sgpr_count 2\n  .amdhsa_user_sgpr_kernarg_segment_ptr 1\n  .amdhsa_system_sgpr_workgroup_id_x 1\n.end_amdhsa_kernel')
    return "\n".join(L) + "\n"

if __name__ == "__main__":
    kw = json.loads(sys.argv[2]) if len(sys.argv) > 2 else {}
    kw['verbose'] = True
    open(sys.argv[1], "w").write(compose(kw))
```

```python
import sys, json
from sched import *
from fast import Pro, valu, salu, srd, NAME
U4 = 53248; VB = 77824; L6B = 126976; V12B = 139264; BIASB = 152576
Yr = lambda p, t: 8 * p + 4 * t
XE_ = lambda p: 104 + 8 * p
XO_ = lambda p: 108 + 8 * p
HA = lambda i: 208 + 4 * i
XF = [236, 240]; TM = [244, 246]
UR, UR8, VR0, VR1, T6R, L16, VD, SO = range(248, 256)
XD, XA0, XAE, XAO, PA, PF1, PF2 = 8, 9, 10, 11, 12, 16, 17
PA = 243; VRB = 20
sW = 3; sX = 16; sO = 20; sV = 24; sU = 28; sU4 = 32; sB = 36; sP = 40
sVS = [44, 45, 46]; sW1k = 47; sWV = 48; sWp = 49; sW1664 = 50; sL6a = 51; sL6b = 52; sT = 53; sMask = 54; sLo = 56; sT0 = 58; sT1 = 59
STAMP0 = 78
DEF = dict(stamps=None, D=16, D0=8, NA=18, slack=7, sp=3, sp0=1, npro=12, lag=2, xaux="", saux="sc0 sc1", waux="", pf=True,
           bar0=14, bar0off=0, baroff=0, barper=30, vcap=2, mdist=3, u4est=4, verbose=False, pf2at=10, last_bar=20, mode='A', Dx=5, XB=262144, SU=0, SV=0, pfat=13, xearly=[], pf2=None)

class Piece:
    def __init__(s, name, region, pre, op, private=False):
        s.name = name; s.region = region; s.pre = pre; s.ops = op if isinstance(op, list) else [op]; s.private = private
        s.readers = []; s.need = INF; s.est = -INF; s.issued = None; s.war = []
def dma(voff, s, soff, off, aux=""):
    so = "0" if soff is None else soff
    return Op(f"buffer_load_dwordx4 v{voff}, s[{s}:{s+3}], {so} offen" + (f" offset:{off}" if off else "") + (f" {aux}" if aux else "") + " lds",
              'dma', rd=[f"v{voff}", 'm0'] + srd(s) + ([] if soff is None else [soff]))
def m0(base, imm):
    assert imm >= 0
    if imm == 0: return salu(f"s_mov_b32 m0, s{base}", wr=['m0'], rd=[f"s{base}"])
    return salu(f"s_add_u32 m0, s{base}, {imm}", wr=['m0'], rd=[f"s{base}"], nb=8)
def dsr(p, d, n, addr, off, wv, pieces):
    mn = {4: 'ds_read_b128', 2: 'ds_read_b64'}[n]
    assert 0 <= off < 65536
    o = Op(f"{mn} {p}[{d}:{d+n-1}], v{addr} offset:{off}", 'dsr', rd=[f"v{addr}"], wr=[f"{p}{d+i}" for i in range(n)])
    o.wv = wv; o.pieces = pieces
    for q in pieces: q.readers.append(o)
    return o

def gen(**kw):
    C = dict(DEF); C.update(kw)
    NA = C['NA']; REM = lambda p: 4 * NA + 6 * p; HB = lambda s: 4 * NA + 78 + 4 * s; BG = lambda l: 4 * NA + 90 + 6 * l
    assert BG(3) <= 256
    em = Emitter(lg_slack=C['slack']); P = Pro(em); W = C['waux']
    st = C['stamps'] is not None
    MA = C['mode'] == 'A'; XA = lambda p: BG(3) + 4 * p
    xslot = lambda c: 2 * c if c <= 6 else 2 * (c - 7) + 1
    xp = {c: Piece(('x', c), [(4096 * xslot(c), 4096 * xslot(c) + 4096)], [m0(sW1k, 4096 * xslot(c) - 128 * c)], dma(XD, sX, None, 128 * c, C['xaux']), True) for c in range(13)}
    up = {}
    for k in range(64):
        if k < 52:
            a = 4096 * (k % 13); pre = []
            if k % 13 == 0 and k:
                pre = [salu(f"s_add_u32 s{sU}, s{sU}, 53248\ns_addc_u32 s{sU+1}, s{sU+1}, 0", wr=[f"s{sU}", f"s{sU+1}"], nb=12)]
                pre[0].cost = 2; pre[0].wv = k // 13
            up[k] = Piece(('u', k), [(a, a + 4096)], pre + [m0(sW1k, a)], dma(L16, sU, 'm0', 0, W))
            up[k].ops[0].ev = {f"s{sU}": k // 13 or None}
        else:
            a = U4 + 4096 * (k - 52)
            up[k] = Piece(('u', k), [(a, a + 4096)], [m0(sW1k, a)], dma(L16, sU4, 'm0', 0, W))
    vp = {}; l6 = {}; v12 = {}
    def vsl(l, a):
        if l == 0: return VB + 12288 * (a - 2)
        return VB + 12288 * ((6 * l + a + 2) % 4)
    for l in range(3):
        for a in range(6):
            sl = vsl(l, a)
            for s in range(3):
                pre = [salu(f"s_mov_b32 s{sVS[s]}, {86528*l + 26624*s}", wr=[f"s{sVS[s]}"], nb=8)] if (a == 0 and l > 0) else []
                vp[(l, a, s)] = Piece(('v', l, a, s), [(sl + 2048 * s, sl + 2048 * s + 2048), (sl + 6144 + 2048 * s, sl + 6144 + 2048 * s + 2048)],
                                      pre + [m0(sWV, sl + 2048 * s - 128 * a)], dma(VD, sV, f"s{sVS[s]}", 128 * a, W))
                if pre: pre[0].wv = l
                vp[(l, a, s)].ops[0].ev = {f"s{sVS[s]}": l or None}
        b = L6B + 6144 * (l % 2)
        adv = lambda r: [salu(f"s_add_u32 s{r}, s{r}, 86528", wr=[f"s{r}"], nb=8)] if l else []
        l6[(l, 0)] = Piece(('l6', l, 0), [(b, b + 4096)], adv(sL6a) + [m0(sW1k, b)], dma(VD, sV, f"s{sL6a}", 0, W))
        l6[(l, 1)] = Piece(('l6', l, 1), [(b + 4096, b + 6144)], adv(sL6b) + [m0(sWp, b + 4096)], dma(VD, sV, f"s{sL6b}", 0, W))
        b = V12B + 6656 * (l % 2)
        v12[l] = Piece(('v12', l), [(b, b + 6656)], adv(sT) + [m0(sW1664, b)], [dma(L16, sV, f"s{sT}", 0, W), dma(L16, sV, f"s{sT}", 640, W)])
    bp = Piece(('b',), [(BIASB, BIASB + 4096)], [m0(sW1k, BIASB)], dma(L16, sB, f"s{sW1k}", 0, W))
    seq = [('G1', 0, p) for p in range(13)]
    lag = C['lag']
    for l in range(3):
        seq.append(('G2', l, (0, 1)))
        done = 0
        for p in range(1, 13):
            if p > 1: seq.append(('G2', l, (p,)))
            if l < 2 and p - lag >= 0: seq.append(('G1', l + 1, p - lag)); done = p - lag + 1
        if l < 2: seq += [('G1', l + 1, p) for p in range(done, 13)]
    mf = []; rd = []; g1 = {}; g2 = {}; start = {}; ring = [0]
    def rslot():
        r = 4 * (ring[0] % NA); ring[0] += 1; return r
    def mfma(d, a, bp_, b, c, wv, ev):
        cs = c if isinstance(c, str) else rng('v', d, 4)
        cr = [] if isinstance(c, str) else vr(d, 4)
        br = [f"{bp_}{b+i}" for i in range(4)]
        m = Op(f"v_mfma_f32_16x16x32_bf16 {rng('v', d, 4)}, a[{a}:{a+3}], {bp_}[{b}:{b+3}], {cs}", 'mfma16', rd=ar(a, 4) + br + cr, wr=vr(d, 4), srcc=cr)
        m.wv = wv; m.ev = ev; m.g = len(mf); mf.append(m); return m
    for (kd, l, p) in seq:
        start[(kd, l, p if kd == 'G1' else p[0])] = len(mf)
        if kd == 'G1':
            xb = XO_(p) if l == 0 else XF[p % 2]; xk = 'v'
            if l == 0 and MA: xb = XA(p); xk = 'a'
            for i in range(7):
                a = rslot(); s, t = i >> 1, i & 1
                if i == 6: r = dsr('a', a, 4, T6R, 6656 * (l % 2) + 64 * p, ('V', l, p, i), [v12[l]])
                else:
                    c, h = (p >> 1, p & 1) if t == 0 else (6 + ((p + 1) >> 1), (p + 1) & 1)
                    if c == 6: base = L6B + 6144 * (l % 2); pc = l6[(l, s >> 1)]
                    else:
                        aa = c if c < 6 else c - 7
                        base = vsl(l, aa) + (6144 if c > 6 else 0); pc = vp[(l, aa, s)]
                    if base < VB: r = dsr('a', a, 4, VRB + h, base + 2048 * s - U4, ('V', l, p, i), [pc])
                    else: r = dsr('a', a, 4, VR1 if h else VR0, base + 2048 * s - VB, ('V', l, p, i), [pc])
                ev = {q: ('V', l, p, i) for q in ar(a, 4)}; ev.update({f'{xk}{xb+z}': ('x', l, p) for z in range(4)})
                if p: ev.update({q: ('h', l, i, p) for q in vr(HA(i), 4)})
                g1[(l, p, i)] = mfma(HA(i), a, xk, xb, None if p else "0", ('h', l, i, p + 1), ev); rd.append(r)
        else:
            for s in range(4):
                for b in p:
                    B = 13 * l + b; lo = 6656 * B
                    pcs = [up[k] for k in range(lo // 4096, (lo + 6655) // 4096 + 1)]
                    far = B >= 32
                    off = lo - 212992 if far else lo % 53248
                    for t in range(2):
                        first = l == 0 and s == 0
                        if s < 3:
                            a = rslot(); r = dsr('a', a, 4, VR0 if far else UR, off + 208 * t + 64 * s, ('U', l, b, t, s), pcs)
                            ev = {q: ('U', l, b, t, s) for q in ar(a, 4)}; hb = HB(s); ev.update({q: ('hb', l, s) for q in ar(hb, 4)})
                        else:
                            r = dsr('a', REM(b) + 4 * t, 2, VR1 if far else UR8, off + 208 * t, ('U', l, b, t, s), pcs)
                            a = REM(b) + 2 * t; hb = BG(l) + 2 - 2 * t
                            ev = {q: ('U', l, b, t, s) for q in ar(REM(b) + 4 * t, 2)}; ev.update({q: ('P', b) for q in ar(REM(b) + 2, 2)})
                            ev.update({q: ('hb', l, 3) for q in ar(BG(l) + 2, 2)})
                        r.far = far
                        if not first: ev.update({q: ('y', b, t, 4 * l + s) for q in vr(Yr(b, t), 4)})
                        g2[(l, b, t, s)] = mfma(Yr(b, t), a, 'a', hb, "1.0" if first else None, ('y', b, t, 4 * l + s + 1), ev); rd.append(r)
    NG = len(mf)
    G20 = start[('G2', 0, 0)]
    def Dist(i): return C['D0'] if i < G20 + 16 else min(C['D'], C['D0'] + (i - G20 - 16) // 4)
    rgap = [[] for _ in range(NG + 1)]
    xr2 = {}; xlate = []
    for i, r in enumerate(rd):
        if i < G20 and i % 7 == 0:
            p = i // 7
            ad, off = (XA0, 0) if p == 0 else ((XAE, 4096 * (p - 1)) if p % 2 == 0 else (XAO, 4096 * (p - 1)))
            x = dsr('v', XO_(p), 4, ad, off, ('x', 0, p), [xp[p >> 1], xp[6 + ((p + 1) >> 1)]])
            if MA:
                xr2[p] = [x, dsr('a', XA(p), 4, ad, off, ('x', 0, p), x.pieces)]
                for z in xr2[p]: z.pg = -2
            else: x.pg = max(-1, i - C['Dx']); xlate.append(x)
        r.pg = max(-1, i - Dist(i)); rgap[r.pg + 1].append(r)
    for p in range(13):
        o = Op(f"ds_read2_b32 a[{REM(p)+2}:{REM(p)+3}], v{PA} offset0:{16*p} offset1:{16*p}", 'dsr', rd=vr(PA), wr=ar(REM(p) + 2, 2))
        o.wv = ('P', p); o.pieces = [bp]; bp.readers.append(o); o.pg = G20 - 40 + 3 * p if MA else -1
        if MA: rgap[o.pg + 1].append(o)
        else: rgap[0].insert(0, o)
    for x in xlate: rgap[x.pg + 1].append(x)
    pieces = list(xp.values()) + list(up.values()) + list(vp.values()) + list(l6.values()) + list(v12.values()) + [bp]
    for q in pieces: q.need = min((r.pg + 0.001 * rgap[r.pg + 1].index(r) if r.pg >= -1 else -2) for r in q.readers)
    pieces.sort(key=lambda q: q.need)
    ov = lambda a, b: any(x0 < y1 and y0 < x1 for (x0, x1) in a.region for (y0, y1) in b.region)
    for i, q in enumerate(pieces): q.war = [o for o in pieces[:i] if ov(o, q)]
    for k in range(52, 64): up[k].est = start[('G1', 2, C['u4est'])]
    bars = set()
    g = C['bar0off'] + C['bar0'] - C['D0'] - 1
    while g < G20 + C['baroff'] - 8: bars.add(g); g += C['bar0']
    if C.get('bars0') is not None: bars = set(C['bars0'])
    for l in range(2):
        g0 = start[('G2', l, 0)] + C['baroff']; n = round(195 / C['barper'])
        for i in range(n): bars.add(g0 + round(i * 195 / n))
    bars.add(start[('G2', 2, 0)] + C['baroff'])
    if C['last_bar'] is not None: bars.add(start[('G2', 2, 0)] + C['baroff'] + C['last_bar'])
    barl = sorted(bars)
    def bar_needs(g):
        nx = min([b for b in barl if b > g] + [NG])
        return [q for q in pieces if not q.private and g <= q.need < nx]
    vq = []
    md = C['mdist']
    def V(op, e, d): op.e = e; op.d = d; vq.append(op)
    def unpack(p):
        for j in range(4):
            e = g1[(0, p, 6)].g + 1; d = G20 + 10 + 8 * p
            V(valu(f"v_lshlrev_b32 v{XE_(p)+j}, 16, v{XO_(p)+j}", vr(XE_(p) + j), vr(XO_(p) + j), wv=('x0', p), ev={f"v{XO_(p)+j}": ('x', 0, p)}), e, d)
            V(valu(f"v_and_b32 v{XO_(p)+j}, s{sMask}, v{XO_(p)+j}", vr(XO_(p) + j), vr(XO_(p) + j), wv=('x0', p), ev={f"v{XO_(p)+j}": ('x', 0, p)}), e, d)
    def hproc(l):
        for s in range(3):
            e = g1[(l, 12, 2 * s + 1)].g + md; d = g2[(l, 0, 0, s)].g - 2
            for j in range(4):
                a, b = HA(2 * s) + j, HA(2 * s + 1) + j
                V(valu(f"v_cvt_pk_bf16_f32 v{a}, v{a}, v{b}", vr(a), vr(a) + vr(b), nb=8, wv=('hc',), ev={f"v{a}": ('h', l, 2 * s, 13), f"v{b}": ('h', l, 2 * s + 1, 13)}), e, d)
            for j in range(4):
                a = HA(2 * s) + j
                V(valu(f"v_accvgpr_write_b32 a{HB(s)+j}, v{a}", ar(HB(s) + j), vr(a), nb=8, wv=('hb', l, s), ev={f"v{a}": ('hc',)}), e, d)
        e = g1[(l, 12, 6)].g + md; d = g2[(l, 0, 0, 3)].g - 2; a = HA(6)
        for j in range(2): V(valu(f"v_cvt_pk_bf16_f32 v{a+2*j}, v{a+2*j}, v{a+2*j+1}", vr(a + 2 * j), vr(a + 2 * j, 2), nb=8, wv=('hc',), ev={q: ('h', l, 6, 13) for q in vr(a + 2 * j, 2)}), e, d)
        for j in range(2): V(valu(f"v_cndmask_b32_e64 v{a+2*j}, 0, v{a+2*j}, s[{sLo}:{sLo+1}]", vr(a + 2 * j), vr(a + 2 * j), nb=8, wv=('hc',)), e, d)
        for j in range(2): V(valu(f"v_accvgpr_write_b32 a{BG(l)+2+j}, v{a+2*j}", ar(BG(l) + 2 + j), vr(a + 2 * j), nb=8, wv=('hb', l, 3)), e, d)
    stores = []
    def xproc(l, p):
        e = g2[(l, p, 1, 3)].g + md
        if l < 2:
            xb = XF[p % 2]; d = g1[(l + 1, p, 0)].g - 2
            e2 = max(e, g1[(l + 1, p - 2, 6)].g + 1 if p >= 2 else e)
        else: xb = HA(p % 7); d = min(NG - 1, e + 10); e2 = e
        for j in range(4):
            t = TM[j % 2]
            V(valu(f"v_mul_f32 v{t}, v{XE_(p)+j}, v{Yr(p,0)+j}", vr(t), vr(XE_(p) + j) + vr(Yr(p, 0) + j), wv=('t0', l, p, j), ev={f"v{XE_(p)+j}": ('x0', p), f"v{Yr(p,0)+j}": ('y', p, 0, 4 * l + 4)}), e, d)
            V(valu(f"v_mul_f32 v{t+1}, v{XO_(p)+j}, v{Yr(p,1)+j}", vr(t + 1), vr(XO_(p) + j) + vr(Yr(p, 1) + j), wv=('t1', l, p, j), ev={f"v{XO_(p)+j}": ('x0', p), f"v{Yr(p,1)+j}": ('y', p, 1, 4 * l + 4)}), e, d)
            V(valu(f"v_cvt_pk_bf16_f32 v{xb+j}, v{t}, v{t+1}", vr(xb + j), vr(t, 2), nb=8, wv=('x', l + 1, p), ev={f"v{t}": ('t0', l, p, j), f"v{t+1}": ('t1', l, p, j)}), e2, d)
        if l == 2:
            s_ = Op(f"buffer_store_dwordx4 v[{xb}:{xb+3}], v{SO}, s[{sO}:{sO+3}], 0 offen offset:{64*p}" + (f" {C['saux']}" if C['saux'] else ""), 'st', rd=vr(xb, 4) + vr(SO) + srd(sO))
            s_.ev = {q: ('x', 3, p) for q in vr(xb, 4)}; s_.after = vq[-1]; stores.append(s_)
    unp = {}
    if MA:
        for p in range(13): unpack(p); unp[p] = vq[:]; del vq[:]
        hproc(0)
    else:
        for p in range(12): unpack(p)
        hproc(0); unpack(12)
    for l in range(3):
        for p in range(13): xproc(l, p)
        if l < 2: hproc(l + 1)
        if l == 1:
            e = rd[g1[(2, 12, 5)].g].pg + 1; d = rd[g2[(2, 6, 0, 0)].g].pg - 1
            V(valu(f"v_add_u32 v{VR0}, {U4}, v{UR}", vr(VR0), vr(UR), nb=8, wv='far'), e, d)
            V(valu(f"v_add_u32 v{VR1}, {U4}, v{UR8}", vr(VR1), vr(UR8), nb=8, wv='far'), e, d)
    for r in rd:
        if getattr(r, 'far', False): r.ev = {r.rd[0]: 'far'}
        elif r.rd[0] in vr(VR0, 2): r.ev = {r.rd[0]: None}
    for i in range(1, len(vq)): vq[i].e = max(vq[i].e, vq[i - 1].e)
    nxt = INF; cnt = 0
    for o in reversed(vq):
        d = min(o.d, nxt)
        if d == nxt:
            cnt += 1
            if cnt > C['vcap'] and d > o.e: d -= 1; cnt = 1
        else: cnt = 1
        o.late = d; nxt = d
        assert o.late >= o.e or o.e >= NG - 1, (o.text, o.e, o.late)
    if st: em.raw(f"s_memtime s[{STAMP0}:{STAMP0+1}]"); em.raw("s_memrealtime s[98:99]")
    enc = C.get('enc')
    em.raw("s_load_dwordx4 s[4:7], s[0:1], 0"); em.raw("s_load_dwordx4 s[8:11], s[0:1], 16")
    em.raw(f"s_getpc_b64 s[64:65]\nL_pc:\ns_mov_b32 s66, L_end-L_pc\ns_mov_b32 s67, 0x20000\ns_bfe_u32 s68, s2, 0x30003\ns_lshl_b32 s68, s68, 7\nv_lshlrev_b32 v19, 10, v0")
    em.emit(Op(f"buffer_load_dword v19, v19, s[64:67], s68 offen", 'vld', rd=['v19'] + srd(64), wr=['v19']))
    sF = 72; sMa, sMb, sD, sI, sSa, sSb = 62, 63, 69, 70, 71, 76; vF = 15
    P(f"""s_lshr_b32 s14, s2, 8
s_cbranch_scc1 L_end
v_lshrrev_b32 v2, 6, v0
v_and_b32 v1, 63, v0
v_readfirstlane_b32 s{sW}, v2
v_lshrrev_b32 v3, 3, v1
v_lshlrev_b32 v{L16}, 4, v1
v_and_b32 v5, 6, v3
v_lshlrev_b32 v5, 4, v5
v_xor_b32 v5, v5, v{L16}
s_movk_i32 s14, 1536
v_mad_u32_u24 v{XD}, v3, s14, v5
v_lshrrev_b32 v4, 5, v1
s_movk_i32 s14, 6656
v_mad_u32_u24 v{VD}, v4, s14, v{XD}
s_and_b32 s{sT0}, s{sW}, 1
s_lshr_b32 s{sT1}, s{sW}, 1
s_lshl_b32 s{sW1k}, s{sW}, 10
s_lshl_b32 s{sWV}, s{sT1}, 12
s_add_u32 s{sWV}, s{sWV}, s{sW1k}
s_mul_i32 s14, s14, s{sT0}
s_mul_i32 s{sL6b}, s{sT1}, 896
s_add_u32 s14, s14, s{sL6b}
v_add_u32 v{VD}, s14, v{VD}
s_lshl2_add_u32 s15, s2, s{sW}
s_mulk_i32 s15, 13312
s_movk_i32 s{sX+2}, 13312
s_mov_b32 s{sX+3}, s67
s_mov_b32 s{sV+2}, 259584
s_mov_b32 s{sV+3}, s67
s_mov_b32 s{sP+2}, {min(C['XB'],259584)}
s_mov_b32 s{sP+3}, s67
s_lshr_b32 s14, s2, 4
s_lshl_b32 s14, s14, 7
s_lshl_b32 s{sT}, s{sT1}, 17
s_add_u32 s14, s14, s{sT}
v_lshlrev_b32 v{PF1}, 11, v1
s_add_u32 s{sMb}, s{sWV}, {U4}
s_movk_i32 s{sD}, 4096
s_movk_i32 s{sI}, 8192
s_movk_i32 s{sSa}, 0
s_movk_i32 s{sSb}, 896
s_bitcmp1_b32 s2, 3
s_cmovk_i32 s{sD}, 2048
s_cmovk_i32 s{sI}, 12288
s_cmovk_i32 s{sSb}, 26624
s_cselect_b32 s{sMa}, s{sMb}, s{sW1k}
s_cselect_b64 s[{sF+2}:{sF+3}], s[{sV+2}:{sV+3}], s[{sX+2}:{sX+3}]
s_cselect_b64 vcc, -1, 0
v_cndmask_b32 v{vF}, v{XD}, v{VD}, vcc
s_cmp_eq_u32 s{sT0}, 1""")
    em.raw("s_waitcnt lgkmcnt(0)")
    if st: em.raw(f"s_memtime s[{STAMP0+2}:{STAMP0+3}]")
    P(f"""s_cselect_b64 s[{sP}:{sP+1}], s[6:7], s[8:9]
s_add_u32 s{sX}, s4, s15
s_addc_u32 s{sX+1}, s5, 0
s_mov_b64 s[{sV}:{sV+1}], s[8:9]
s_mov_b64 s[{sF}:{sF+1}], s[{sX}:{sX+1}]
s_cbranch_vccz L_loop
s_mov_b64 s[{sF}:{sF+1}], s[8:9]""")
    em.emit(Op(f"buffer_load_dword v18, v{PF1}, s[{sP}:{sP+3}], s14 offen", 'vld', rd=vr(PF1) + srd(sP), wr=['v18']))
    xa = (" " + C['xaux']) if C['xaux'] else ""
    em.raw(f"""L_loop:
s_mov_b32 m0, s{sMa}
s_add_u32 s{sMb}, s{sMa}, s{sD}
buffer_load_dwordx4 v{vF}, s[{sF}:{sF+3}], s{sSa} offen{xa} lds
s_mov_b32 m0, s{sMb}
s_add_u32 s{sMa}, s{sMa}, s{sI}
buffer_load_dwordx4 v{vF}, s[{sF}:{sF+3}], s{sSb} offen{xa} lds
s_addk_i32 s{sSb}, 128
s_addk_i32 s{sSa}, 128
s_cmpk_lg_i32 s{sSa}, 768
s_cbranch_scc1 L_loop""")
    todo = list(pieces)
    nis = [0]
    def issue_now(q, silent=False):
        n0 = len(em.out)
        for o in q.pre + q.ops: em.emit(o)
        if silent: del em.out[n0:]
        nis[0] += len(q.ops)
        if st and ['P', nis[0]] in C['stamps']:
            i = C['stamps'].index(['P', nis[0]]); em.raw(f"s_memtime s[{STAMP0+6+2*i}:{STAMP0+7+2*i}]")
        q.issued = em.gap; todo.remove(q)
    for a in range(6):
        for q in ([xp[a], xp[7 + a]] if MA else [vp[(0, a, 0)], vp[(0, a, 1)]]): issue_now(q, True)
    P(f"""s_lshl_b32 s{sWp}, s{sT0}, 10
s_mul_i32 s{sL6a}, s{sT1}, {26624-896}
s_add_u32 s{sL6a}, s{sL6a}, 768
s_sub_u32 s{sL6b}, {53248+768}, s{sL6b}
s_mul_i32 s{sW1664}, s{sW}, 1664
s_add_u32 s{sT}, s{sW1664}, 79872
s_mov_b32 s{sVS[0]}, 0
s_mov_b32 s{sVS[1]}, 26624
s_mov_b32 s{sVS[2]}, 53248""")
    em.raw("s_load_dwordx2 s[12:13], s[0:1], 32")
    P(f"""s_add_u32 s14, s14, {C['XB']}
s_mov_b32 s{sP+2}, {259584-16384*C['SV']}
s_cmp_eq_u32 s{sT0}, 1
s_cselect_b32 s{sP+2}, {259584-16384*C['SU']}, s{sP+2}""")
    if st: em.raw("s_load_dwordx2 s[60:61], s[0:1], 48")
    P(f"""s_mov_b32 s{sU}, s6
s_mov_b32 s{sU+1}, s7
s_mov_b32 s{sU+2}, 53248
s_mov_b32 s{sU+3}, 0x20000
s_add_u32 s{sU4}, s6, {212992-U4}
s_addc_u32 s{sU4+1}, s7, 0
s_mov_b32 s{sU4+2}, {259584-212992+U4}
s_mov_b32 s{sU4+3}, 0x20000
s_mov_b32 s{sB}, s10
s_mov_b32 s{sB+1}, s11
s_mov_b32 s{sB+2}, 2496
s_mov_b32 s{sB+3}, 0x20000
s_mov_b32 s{sO+2}, 13312
s_mov_b32 s{sO+3}, 0x20000
s_mov_b32 s{sMask}, 0xffff0000
s_mov_b32 s{sLo}, -1
s_mov_b32 s{sLo+1}, 0
v_and_b32 v2, 15, v1
v_lshrrev_b32 v3, 4, v1
v_lshlrev_b32 v6, 4, v3
v_mul_u32_u24 v7, 416, v2
v_add_u32 v{UR}, v7, v6
v_and_b32 v13, 1, v3
v_lshl_add_u32 v7, v13, 3, v7
v_add_u32 v{UR8}, 192, v7
v_mul_u32_u24 v7, 832, v2
v_add_u32 v{SO}, v7, v6
v_xor_b32 v13, 32, v6
v_cmp_gt_u32 vcc, 8, v2
v_cndmask_b32 v13, v13, v{SO}, vcc
v_add_u32 v{T6R}, {V12B}, v13
v_mul_u32_u24 v7, 832, v3
v_lshl_add_u32 v7, v2, 2, v7
v_add_u32 v{PA}, {BIASB}, v7
v_lshrrev_b32 v4, 3, v2
v_and_b32 v5, 3, v2
v_lshl_add_u32 v7, v4, 2, v5
v_lshlrev_b32 v7, 7, v7
v_and_b32 v13, 4, v2
v_lshl_add_u32 v7, v13, 8, v7
v_and_b32 v13, 2, v2
v_lshlrev_b32 v13, 4, v13
v_lshl_or_b32 v13, v4, 6, v13
v_xor_b32 v13, v13, v6
v_add_u32 v13, {VB}, v13
v_add_u32 v{VR0}, v7, v13
v_xor_b32 v{VR1}, 64, v{VR0}
v_subrev_u32 v{VRB}, {VB-U4}, v{VR0}
v_subrev_u32 v{VRB+1}, {VB-U4}, v{VR1}
v_lshrrev_b32 v7, 1, v2
v_lshl_add_u32 v7, v7, 7, s{sW1k}
v_and_b32 v5, 1, v2
v_and_b32 v13, 12, v2
v_lshlrev_b32 v13, 3, v13
v_xor_b32 v13, v13, v6
v_lshlrev_b32 v14, 6, v5
v_xor_b32 v13, v13, v14
v_add_u32 v7, v7, v13
v_mul_u32_u24 v14, 49152, v5
v_add_u32 v{XA0}, v7, v14
v_lshlrev_b32 v14, 12, v5
v_sub_u32 v{XAE}, v7, v14
v_add_u32 v{XAE}, 4096, v{XAE}
v_xor_b32 v7, 64, v7
v_add_u32 v{XAO}, v7, v14
v_mov_b32 v7, 0x3f80""")
    for l in range(3):
        P(f"""v_cmp_eq_u32 vcc, {l}, v3
v_cndmask_b32 v13, 0, v7, vcc
v_accvgpr_write_b32 a{BG(l)+1}, 0
v_accvgpr_write_b32 a{BG(l)+4}, v13
v_lshlrev_b32 v13, 16, v13
v_accvgpr_write_b32 a{BG(l)+5}, 0
v_accvgpr_write_b32 a{BG(l)}, v13""")
    em.raw("s_waitcnt lgkmcnt(0)")
    P(f"s_add_u32 s{sO}, s12, s15\ns_addc_u32 s{sO+1}, s13, 0")
    em.raw('; SPLIT', cost=0, nb=0, ws=0)
    if enc == 'split': em.raw("s_memrealtime s[96:97]\ns_waitcnt lgkmcnt(0)")
    def smem():
        if not (C['SU'] or C['SV']): return
        P(f"""s_lshr_b32 s{sD}, s2, 3
s_lshl2_add_u32 s{sD}, s{sD}, s{sW}
s_lshl_b32 s{sD}, s{sD}, 7
s_add_u32 s{sF}, s6, s{sD}
s_addc_u32 s{sF+1}, s7, 0
s_add_u32 s{sF+2}, s8, s{sD}
s_addc_u32 s{sF+3}, s9, 0""")
        for i in range(C['SV']): em.raw(f"s_load_dword s{sD}, s[{sF+2}:{sF+3}], {259584 - 16384*(C['SV']-i)}", nb=8)
        for i in range(C['SU']): em.raw(f"s_load_dword s{sD}, s[{sF}:{sF+1}], {259584 - 16384*(C['SU']-i)}", nb=8)
    def xread(r):
        for q in r.pieces: r.needs.append(q.ops[-1])
        em.emit(r)
    if MA:
        issue_now(xp[6])
        if C['XB'] < 259584 and C['pf2'] is None: em.emit(Op(f"buffer_load_dword v17, v{PF1}, s[{sP}:{sP+3}], s14 offen", 'vld', rd=vr(PF1) + srd(sP), wr=['v17']))
        issue_now(bp)
        smem()
        while nis[0] < C['pfat']: issue_now(todo[0])
        em.raw("s_waitcnt lgkmcnt(0)")
        prev = None
        for p in list(range(1, 12)) + [0, 12, None]:
            if p is not None:
                for r in xr2[p]: xread(r)
            if nis[0] < C['npro']: issue_now(todo[0])
            if prev is not None:
                for o in unp[prev]: em.emit(o)
            prev = p
    else:
        smem()
        for c in C['xearly']: issue_now(xp[c])
        for q in [q for q in todo if not q.private and q.name[0] != 'u' and (q is bp or q.name[1] == 0)]: issue_now(q)
    while nis[0] < C['npro']:
        q = todo[0]; assert not q.war; issue_now(q)
        if not MA and nis[0] == C['pf2']: em.emit(Op(f"buffer_load_dword v17, v{PF1}, s[{sP}:{sP+3}], s14 offen", 'vld', rd=vr(PF1) + srd(sP), wr=['v17']))
    if not MA: em.raw("s_waitcnt lgkmcnt(0)")
    freed = 0; slack = []
    def barop(g):
        nd = bar_needs(g)
        for q in nd: assert q.issued is not None, f"piece {q.name} not issued at barrier {g} (need {q.need})"
        return Op("s_barrier", 'bar', needs=[q.ops[-1] for q in nd], cost=2), nd
    def elig(q, g):
        if q.est > g: return False
        for o in q.war:
            for r in o.readers:
                if r.seq is None or r.seq >= (em.lg_done if o.private else freed): return False
        return True
    stamps = {}
    if st:
        for i, key in enumerate(C['stamps']):
            if key[0] != 'P': stamps[start[tuple(key)]] = f"s_memtime s[{STAMP0+6+2*i}:{STAMP0+7+2*i}]"
    if isinstance(enc, list): stamps[start[tuple(enc)]] = "s_memrealtime s[96:97]"
    cur = None; curq = []; lastd = -INF; vi = 0; fill = []; T = 0; tl = {}
    for g in range(-1, NG):
        em.gap = g; o0 = len(em.out); shadow = g >= 0
        if g >= 0:
            if g in stamps: em.raw(stamps[g], nb=8)
            em.emit(mf[g])
        om = len(em.out)
        if g in bars or g == -1:
            b, nd = barop(g)
            em.emit(b); freed = em.lg_done; shadow = False
            slack += [(g - q.issued, q.name) for q in nd if q.issued >= 0]
            if g == -1 and enc == 'bar0': em.raw("s_memrealtime s[96:97]")
            if g == -1 and st: em.raw(f"s_memtime s[{STAMP0+4}:{STAMP0+5}]")
        lg, vm = em.need(mf[g + 1]) if 0 <= g < NG - 1 else (0, 0)
        if g + 1 in bars:
            vm = em.need(barop(g + 1)[0])[1]
            if g + 2 < NG: lg = max(lg, em.need(mf[g + 2])[0])
            lg = max(lg, em.lg_done + 1) if em.lg_done < len(em.lg) and em.lg[em.lg_done].gap <= g - em.lg_slack else lg
        if lg or vm: em.wait(lg, vm); shadow = False
        sp = C['sp0'] if g < G20 + 16 else C['sp']
        if cur is None:
            el = [q for q in todo if elig(q, g)]
            if el: cur = el[0]; curq = list(cur.pre) + list(cur.ops); todo.remove(cur)
        if cur and curq[0].kind == 'salu' and (shadow or g < G20): em.emit(curq.pop(0))
        for r in rgap[g + 1]:
            for q in r.pieces:
                if q.private: r.needs.append(q.ops[-1])
            em.emit(r)
        nf = len(rgap[g + 1]) + (2 if g in bars else 0)
        if cur and curq[0].kind == 'dma' and g - lastd >= sp:
            em.emit(curq.pop(0)); lastd = g; nf += 2
            if not curq: cur.issued = g; cur = None
        elif stores and stores[0].after.gap is not None:
            em.emit(stores.pop(0)); nf += 4
        while vi < len(vq) and (g == NG - 1 or (vq[vi].e <= g and (nf < 2 or vq[vi].late <= g or (g < G20 and nf < 3)))):
            em.emit(vq[vi]); vi += 1; nf += 1
            if g == NG - 1 and stores and stores[0].after.gap is not None: em.emit(stores.pop(0))
        c = sum(x[2] for x in em.out[o0:]) - (1 if g >= 0 and len(em.out) > om and em.out[om][0].startswith('s_') and not em.out[om][0].startswith('s_barrier') else 0)
        fill.append(c); tl[g] = T; T += max(4, c)
    assert not todo and cur is None and not stores and vi == len(vq)
    if st:
        ns = 3 + len(C['stamps'])
        em.raw(f"s_memtime s[{STAMP0+2*ns}:{STAMP0+2*ns+1}]"); ns += 1
        em.raw("s_waitcnt vmcnt(0)")
        em.raw(f"s_memtime s[{STAMP0+2*ns}:{STAMP0+2*ns+1}]"); ns += 1
        assert STAMP0 + 2 * ns <= 98
        em.raw("s_memrealtime s[100:101]")
        em.raw("s_waitcnt lgkmcnt(0)")
        em.raw(f"s_mov_b32 s16, s60\ns_mov_b32 s17, s61\ns_mov_b32 s18, 65536\ns_mov_b32 s19, 0x20000")
        em.raw(f"s_lshl_b32 s20, s2, 2\ns_add_u32 s20, s20, s{sW}\ns_lshl_b32 s20, s20, 6\nv_mov_b32 v1, s20\ns_mov_b64 exec, 1")
        for i in range(12): em.raw(f"v_mov_b32 v0, s{STAMP0+2*i}\ns_nop 1\nbuffer_store_dword v0, v1, s[16:19], 0 offen offset:{4*i}\ns_nop 1")
    if enc:
        if enc == 'end': em.raw("s_memrealtime s[96:97]")
        em.raw("s_waitcnt vmcnt(0)")
        if enc == 'drain': em.raw("s_memrealtime s[96:97]")
        em.raw("s_waitcnt lgkmcnt(0)\nL_sp:\ns_memrealtime s[100:101]\ns_waitcnt lgkmcnt(0)\ns_sub_u32 s100, s100, s96\ns_cmp_lt_u32 s100, 2000\ns_cbranch_scc1 L_sp")
    if C['verbose']:
        print("slots", T, "waits", em.nwait, "nops", em.nnop, "bytes", sum(x[3] for x in em.out), "bars", barl)
        print("phase slots", {k: tl[v] for k, v in start.items() if k[2] == 0 and k[0] == 'G2'})
        print("fill", "".join(str(min(c, 9)) for c in fill))
        print("slack", [(s_, n) for s_, n in slack])
    return [(t, gap) for (t, gap, c, nb) in em.out]

def compose(kw):
    ab = kw.pop('B', None)
    A = gen(**kw)
    L = ["; DCN-v2 cross network, generated by gen/v2.py", "; @launch grid=(256,1,1) block=(256,1,1) lds=163840",
         '.amdgcn_target "amdgcn-amd-amdhsa--gfx950"', ".text", f".globl {NAME}_kernel", ".p2align 8", f".type {NAME}_kernel,@function", f"{NAME}_kernel:"]
    if ab is None: L += [t for t, g in A]
    else:
        Bv = gen(**{**kw, **ab, 'mode': 'B'})
        sp = [t for t, g in A].index('; SPLIT')
        assert A[:sp] == Bv[:sp]
        k = 0
        while A[-1 - k] == Bv[-1 - k]: k += 1
        while not A[-k][0].startswith('v_mfma'): k -= 1
        k -= 1
        print("merge at gap", A[-k][1])
        L += [t for t, g in A[:sp]] + ["s_bitcmp1_b32 s2, 3", "s_cbranch_scc1 L_B"] + [t for t, g in A[sp:-k]] + ["s_branch L_M", "L_B:"]
        L += [t for t, g in Bv[sp:-k]] + ["L_M:"] + [t for t, g in A[-k:]]
    L.append("L_end:\ns_endpgm")
    L.append(f'.section .rodata,"a"\n.p2align 6\n.amdhsa_kernel {NAME}_kernel\n  .amdhsa_next_free_vgpr 512\n  .amdhsa_next_free_sgpr 102\n  .amdhsa_accum_offset 256\n  .amdhsa_group_segment_fixed_size 0\n  .amdhsa_kernarg_size 56\n  .amdhsa_user_sgpr_count 2\n  .amdhsa_user_sgpr_kernarg_segment_ptr 1\n  .amdhsa_system_sgpr_workgroup_id_x 1\n.end_amdhsa_kernel')
    return "\n".join(L) + "\n"

if __name__ == "__main__":
    kw = json.loads(sys.argv[2]) if len(sys.argv) > 2 else {}
    kw['verbose'] = True
    open(sys.argv[1], "w").write(compose(kw))
```

```python
import sys, json
from sched import *
from fast import Pro, valu, salu, srd, NAME
U4 = 53248; VB = 77824; L6B = 126976; V12B = 139264; BIASB = 152576
Yr = lambda p, t: 8 * p + 4 * t
XE_ = lambda p: 104 + 8 * p
XO_ = lambda p: 108 + 8 * p
HA = lambda i: 208 + 4 * i
XF = [236, 240]; TM = [244, 246]
UR, UR8, VR0, VR1, T6R, L16, VD, SO = range(248, 256)
XD, XA0, XAE, XAO, PA, PF1, PF2 = 8, 9, 10, 11, 12, 16, 17
PA = 243; VRB = 20
sW = 3; sX = 16; sO = 20; sV = 24; sU = 28; sU4 = 32; sB = 36; sP = 40
sVS = [44, 45, 46]; sW1k = 47; sWV = 48; sWp = 49; sW1664 = 50; sL6a = 51; sL6b = 52; sT = 53; sMask = 54; sLo = 56; sT0 = 58; sT1 = 59
STAMP0 = 78
DEF = dict(stamps=None, D=16, D0=8, NA=18, slack=7, sp=3, sp0=1, npro=12, lag=2, xaux="", saux="sc0 sc1", waux="", pf=True,
           bar0=14, bar0off=0, baroff=0, barper=30, vcap=2, mdist=3, u4est=4, verbose=False, pf2at=10, last_bar=20, mode='A', Dx=5, XB=262144, SU=0, SV=0, pfat=13, xearly=[], pf2=None, xbars=[], al=1, Q=99, Pat=None, ufill=3, pfw=5, post=0, pf3=None, spend=16, touch=0, fl=0, kB=6, kA=6, tA=17, tB=27)

REMV = {}
class Piece:
    def __init__(s, name, region, pre, op, private=False):
        s.name = name; s.region = region; s.pre = pre; s.ops = op if isinstance(op, list) else [op]; s.private = private
        s.readers = []; s.need = INF; s.est = -INF; s.issued = None; s.war = []
def dma(voff, s, soff, off, aux=""):
    so = "0" if soff is None else soff
    return Op(f"buffer_load_dwordx4 v{voff}, s[{s}:{s+3}], {so} offen" + (f" offset:{off}" if off else "") + (f" {aux}" if aux else "") + " lds",
              'dma', rd=[f"v{voff}", 'm0'] + srd(s) + ([] if soff is None else [soff]))
def m0(base, imm):
    assert imm >= 0
    if imm == 0: return salu(f"s_mov_b32 m0, s{base}", wr=['m0'], rd=[f"s{base}"])
    return salu(f"s_add_u32 m0, s{base}, {imm}", wr=['m0'], rd=[f"s{base}"], nb=8)
def dsr(p, d, n, addr, off, wv, pieces):
    mn = {4: 'ds_read_b128', 2: 'ds_read_b64'}[n]
    assert 0 <= off < 65536
    o = Op(f"{mn} {p}[{d}:{d+n-1}], v{addr} offset:{off}", 'dsr', rd=[f"v{addr}"], wr=[f"{p}{d+i}" for i in range(n)])
    o.wv = wv; o.pieces = pieces
    for q in pieces: q.readers.append(o)
    return o

def gen(**kw):
    C = dict(DEF); C.update(kw)
    NA = C['NA']; REM = lambda p: 4 * NA + 6 * p; HB = lambda s: 4 * NA + 78 + 4 * s; BG = lambda l: 4 * NA + 90 + 6 * l
    assert BG(3) <= 256
    em = Emitter(lg_slack=C['slack']); P = Pro(em); W = C['waux']
    st = C['stamps'] is not None
    MA = C['mode'] == 'A'; XA = lambda p: BG(3) + 4 * p
    xslot = lambda c: 2 * c if c <= 6 else 2 * (c - 7) + 1
    xp = {c: Piece(('x', c), [(4096 * xslot(c), 4096 * xslot(c) + 4096)], [m0(sW1k, 4096 * xslot(c) - 128 * c)], dma(XD, sX, None, 128 * c, C['xaux']), True) for c in range(13)}
    up = {}
    for k in range(64):
        if k < 52:
            a = 4096 * (k % 13); pre = []
            if k % 13 == 0 and k:
                pre = [salu(f"s_add_u32 s{sU}, s{sU}, 53248\ns_addc_u32 s{sU+1}, s{sU+1}, 0", wr=[f"s{sU}", f"s{sU+1}"], nb=12)]
                pre[0].cost = 2; pre[0].wv = k // 13
            up[k] = Piece(('u', k), [(a, a + 4096)], pre + [m0(sW1k, a)], dma(L16, sU, 'm0', 0, W))
            up[k].ops[0].ev = {f"s{sU}": k // 13 or None}
        else:
            a = U4 + 4096 * (k - 52)
            up[k] = Piece(('u', k), [(a, a + 4096)], [m0(sW1k, a)], dma(L16, sU4, 'm0', 0, W))
    vp = {}; l6 = {}; v12 = {}
    def vsl(l, a):
        if l == 0: return VB + 12288 * (a - 2)
        return VB + 12288 * ((6 * l + a + 2) % 4)
    for l in range(3):
        for a in range(6):
            sl = vsl(l, a)
            for s in range(3):
                pre = [salu(f"s_mov_b32 s{sVS[s]}, {86528*l + 26624*s}", wr=[f"s{sVS[s]}"], nb=8)] if (a == 0 and l > 0) else []
                vp[(l, a, s)] = Piece(('v', l, a, s), [(sl + 2048 * s, sl + 2048 * s + 2048), (sl + 6144 + 2048 * s, sl + 6144 + 2048 * s + 2048)],
                                      pre + [m0(sWV, sl + 2048 * s - 128 * a)], dma(VD, sV, f"s{sVS[s]}", 128 * a, W))
                if pre: pre[0].wv = l
                vp[(l, a, s)].ops[0].ev = {f"s{sVS[s]}": l or None}
        b = L6B + 6144 * (l % 2)
        adv = lambda r: [salu(f"s_add_u32 s{r}, s{r}, 86528", wr=[f"s{r}"], nb=8)] if l else []
        l6[(l, 0)] = Piece(('l6', l, 0), [(b, b + 4096)], adv(sL6a) + [m0(sW1k, b)], dma(VD, sV, f"s{sL6a}", 0, W))
        l6[(l, 1)] = Piece(('l6', l, 1), [(b + 4096, b + 6144)], adv(sL6b) + [m0(sWp, b + 4096)], dma(VD, sV, f"s{sL6b}", 0, W))
        b = V12B + 6656 * (l % 2)
        v12[l] = Piece(('v12', l), [(b, b + 6656)], adv(sT) + [m0(sW1664, b)], [dma(L16, sV, f"s{sT}", 0, W), dma(L16, sV, f"s{sT}", 640, W)])
    bp = Piece(('b',), [(BIASB, BIASB + 4096)], [m0(sW1k, BIASB)], dma(L16, sB, f"s{sW1k}", 0, W))
    seq = [('G1', 0, p) for p in range(13)]
    lag = C['lag']
    for l in range(3):
        seq.append(('G2', l, (0, 1)))
        done = 0
        for p in range(1, 13):
            if p > 1: seq.append(('G2', l, (p,)))
            if l < 2 and p - lag >= 0: seq.append(('G1', l + 1, p - lag)); done = p - lag + 1
        if l < 2: seq += [('G1', l + 1, p) for p in range(done, 13)]
    mf = []; rd = []; g1 = {}; g2 = {}; start = {}; ring = [0]
    def rslot():
        r = 4 * (ring[0] % NA); ring[0] += 1; return r
    def mfma(d, a, bp_, b, c, wv, ev):
        cs = c if isinstance(c, str) else rng('v', d, 4)
        cr = [] if isinstance(c, str) else vr(d, 4)
        br = [f"{bp_}{b+i}" for i in range(4)]
        m = Op(f"v_mfma_f32_16x16x32_bf16 {rng('v', d, 4)}, a[{a}:{a+3}], {bp_}[{b}:{b+3}], {cs}", 'mfma16', rd=ar(a, 4) + br + cr, wr=vr(d, 4), srcc=cr)
        m.wv = wv; m.ev = ev; m.g = len(mf); mf.append(m); return m
    for (kd, l, p) in seq:
        start[(kd, l, p if kd == 'G1' else p[0])] = len(mf)
        if kd == 'G1':
            xb = XO_(p) if l == 0 else XF[p % 2]; xk = 'v'
            if l == 0 and MA: xb = XA(p); xk = 'a'
            for i in range(7):
                a = rslot(); s, t = i >> 1, i & 1
                if i == 6: r = dsr('a', a, 4, T6R, 6656 * (l % 2) + 64 * p, ('V', l, p, i), [v12[l]])
                else:
                    c, h = (p >> 1, p & 1) if t == 0 else (6 + ((p + 1) >> 1), (p + 1) & 1)
                    if c == 6: base = L6B + 6144 * (l % 2); pc = l6[(l, s >> 1)]
                    else:
                        aa = c if c < 6 else c - 7
                        base = vsl(l, aa) + (6144 if c > 6 else 0); pc = vp[(l, aa, s)]
                    if base < VB: r = dsr('a', a, 4, VRB + h, base + 2048 * s - U4, ('V', l, p, i), [pc])
                    else: r = dsr('a', a, 4, VR1 if h else VR0, base + 2048 * s - VB, ('V', l, p, i), [pc])
                ev = {q: ('V', l, p, i) for q in ar(a, 4)}; ev.update({f'{xk}{xb+z}': ('x', l, p) for z in range(4)})
                if p: ev.update({q: ('h', l, i, p) for q in vr(HA(i), 4)})
                g1[(l, p, i)] = mfma(HA(i), a, xk, xb, None if p else "0", ('h', l, i, p + 1), ev); rd.append(r)
        else:
            for s in range(4):
                for b in p:
                    B = 13 * l + b; lo = 6656 * B
                    pcs = [up[k] for k in range(lo // 4096, (lo + 6655) // 4096 + 1)]
                    far = B >= 32
                    off = lo - 212992 if far else lo % 53248
                    for t in range(2):
                        first = l == 0 and s == 0
                        if s < 3:
                            a = rslot(); r = dsr('a', a, 4, VR0 if far else UR, off + 208 * t + 64 * s, ('U', l, b, t, s), pcs)
                            ev = {q: ('U', l, b, t, s) for q in ar(a, 4)}; hb = HB(s); ev.update({q: ('hb', l, s) for q in ar(hb, 4)})
                        else:
                            r = dsr('a', REM(b) + 4 * t, 2, VR1 if far else UR8, off + 208 * t, ('U', l, b, t, s), pcs)
                            a = REM(b) + 2 * t; hb = BG(l) + 2 - 2 * t
                            ev = {q: ('U', l, b, t, s) for q in ar(REM(b) + 4 * t, 2)}; ev.update({q: ('P', b) for q in ar(REM(b) + 2, 2)})
                            ev.update({q: ('hb', l, 3) for q in ar(BG(l) + 2, 2)})
                        r.far = far
                        if not first: ev.update({q: ('y', b, t, 4 * l + s) for q in vr(Yr(b, t), 4)})
                        g2[(l, b, t, s)] = mfma(Yr(b, t), a, 'a', hb, "1.0" if first else None, ('y', b, t, 4 * l + s + 1), ev); rd.append(r)
    NG = len(mf)
    G20 = start[('G2', 0, 0)]
    def Dist(i): return C['D0'] if i < G20 + 16 else min(C['D'], C['D0'] + (i - G20 - 16) // 4)
    rgap = [[] for _ in range(NG + 1)]
    xr2 = {}; xlate = []
    for i, r in enumerate(rd):
        if i < G20 and i % 7 == 0:
            p = i // 7
            ad, off = (XA0, 0) if p == 0 else ((XAE, 4096 * (p - 1)) if p % 2 == 0 else (XAO, 4096 * (p - 1)))
            x = dsr('v', XO_(p), 4, ad, off, ('x', 0, p), [xp[p >> 1], xp[6 + ((p + 1) >> 1)]])
            if MA:
                xr2[p] = [x, dsr('a', XA(p), 4, ad, off, ('x', 0, p), x.pieces)]
                for z in xr2[p]: z.pg = -2
            else: x.pg = max(-1, i - C['Dx']); xlate.append(x)
        r.pg = max(-1, i - Dist(i)); rgap[r.pg + 1].append(r)
    for p in range(13):
        o = Op(f"ds_read2_b32 a[{REM(p)+2}:{REM(p)+3}], v{PA} offset0:{16*p} offset1:{16*p}", 'dsr', rd=vr(PA), wr=ar(REM(p) + 2, 2))
        o.wv = ('P', p); o.pieces = [bp]; bp.readers.append(o); o.pg = (G20 - 40 + 3 * p if MA else -1) if C['Pat'] is None else C['Pat'][0] + C['Pat'][1] * p
        if o.pg >= 0: rgap[o.pg + 1].append(o)
        else: rgap[0].insert(0, o)
    for x in xlate: rgap[x.pg + 1].append(x)
    pieces = list(xp.values()) + list(up.values()) + list(vp.values()) + list(l6.values()) + list(v12.values()) + [bp]
    for q in pieces: q.need = min((r.pg + 0.001 * rgap[r.pg + 1].index(r) if r.pg >= -1 else -2) for r in q.readers)
    pieces.sort(key=lambda q: q.need)
    ov = lambda a, b: any(x0 < y1 and y0 < x1 for (x0, x1) in a.region for (y0, y1) in b.region)
    for i, q in enumerate(pieces): q.war = [o for o in pieces[:i] if ov(o, q)]
    for k in range(52, 64): up[k].est = start[('G1', 2, C['u4est'])]
    bars = set()
    g = C['bar0off'] + C['bar0'] - C['D0'] - 1
    while g < G20 + C['baroff'] - 8: bars.add(g); g += C['bar0']
    if C.get('bars0') is not None: bars = set(C['bars0'])
    for l in range(2):
        g0 = start[('G2', l, 0)] + C['baroff']; n = round(195 / C['barper'])
        for i in range(n): bars.add(g0 + round(i * 195 / n))
    bars.add(start[('G2', 2, 0)] + C['baroff'])
    if C['last_bar'] is not None: bars.add(start[('G2', 2, 0)] + C['baroff'] + C['last_bar'])
    bars |= set(C['xbars'])
    barl = sorted(bars)
    def bar_needs(g):
        nx = min([b for b in barl if b > g] + [NG])
        return [q for q in pieces if not q.private and g <= q.need < nx]
    vq = []
    md = C['mdist']
    def V(op, e, d): op.e = e; op.d = d; vq.append(op)
    def unpack(p):
        for j in range(4):
            e = g1[(0, p, 6)].g + 1; d = G20 + 10 + 8 * p
            V(valu(f"v_lshlrev_b32 v{XE_(p)+j}, 16, v{XO_(p)+j}", vr(XE_(p) + j), vr(XO_(p) + j), wv=('x0', p), ev={f"v{XO_(p)+j}": ('x', 0, p)}), e, d)
            V(valu(f"v_and_b32 v{XO_(p)+j}, s{sMask}, v{XO_(p)+j}", vr(XO_(p) + j), vr(XO_(p) + j), wv=('x0', p), ev={f"v{XO_(p)+j}": ('x', 0, p)}), e, d)
    def hproc(l):
        for s in range(3):
            e = g1[(l, 12, 2 * s + 1)].g + md; d = g2[(l, 0, 0, s)].g - 2
            for j in range(4):
                a, b = HA(2 * s) + j, HA(2 * s + 1) + j
                V(valu(f"v_cvt_pk_bf16_f32 v{a}, v{a}, v{b}", vr(a), vr(a) + vr(b), nb=8, wv=('hc',), ev={f"v{a}": ('h', l, 2 * s, 13), f"v{b}": ('h', l, 2 * s + 1, 13)}), e, d)
            for j in range(4):
                a = HA(2 * s) + j
                V(valu(f"v_accvgpr_write_b32 a{HB(s)+j}, v{a}", ar(HB(s) + j), vr(a), nb=8, wv=('hb', l, s), ev={f"v{a}": ('hc',)}), e, d)
        e = g1[(l, 12, 6)].g + md; d = g2[(l, 0, 0, 3)].g - 2; a = HA(6)
        for j in range(2): V(valu(f"v_cvt_pk_bf16_f32 v{a+2*j}, v{a+2*j}, v{a+2*j+1}", vr(a + 2 * j), vr(a + 2 * j, 2), nb=8, wv=('hc',), ev={q: ('h', l, 6, 13) for q in vr(a + 2 * j, 2)}), e, d)
        for j in range(2): V(valu(f"v_cndmask_b32_e64 v{a+2*j}, 0, v{a+2*j}, s[{sLo}:{sLo+1}]", vr(a + 2 * j), vr(a + 2 * j), nb=8, wv=('hc',)), e, d)
        for j in range(2): V(valu(f"v_accvgpr_write_b32 a{BG(l)+2+j}, v{a+2*j}", ar(BG(l) + 2 + j), vr(a + 2 * j), nb=8, wv=('hb', l, 3)), e, d)
    stores = []
    RL = lambda p: HA(p % 7) if C['fl'] < 2 else (HA((p - 1) % 7) if p else XF[0])
    def flstore(p, e, d):
        def stq(r, off, tag):
            s_ = Op(f"buffer_store_dwordx4 v[{r}:{r+3}], v{SO}, s[{sO}:{sO+3}], 0 offen offset:{off}" + (f" {C['saux']}" if C['saux'] else ""), 'st', rd=vr(r, 4) + vr(SO) + srd(sO))
            s_.ev = {q: tag for q in vr(r, 4)}; s_.after = vq[-1]; stores.append(s_)
        if p == 0: return
        V(salu("s_mov_b64 vcc, s[62:63]" if p == 1 else "s_not_b64 vcc, vcc", wr=['vcc']), e, d)
        b, o = (p, p - 1) if p % 2 else (p - 1, p)
        dst = (XF[1] if p == 1 else RL(o)) if p % 2 else RL(b)
        for j in range(4):
            V(valu(f"v_cndmask_b32_dpp v{dst+j}, v{RL(b)+j}, v{RL(o)+j}, vcc quad_perm:[1,0,3,2] row_mask:0xf bank_mask:0xf", vr(dst + j), vr(RL(b) + j) + vr(RL(o) + j), nb=8,
                   wv=('o', p), ev={f"v{RL(b)+j}": ('x', 3, b), f"v{RL(o)+j}": ('x', 3, o)}), e, d)
        stq(dst, 128 * (p // 2) if p % 2 else 768 + 128 * (p // 2), ('o', p))
        if p == 12:
            for j in range(4): V(valu(f"v_cndmask_b32 v{RL(0)+j}, v{RL(12)+j}, v{RL(0)+j}, vcc", vr(RL(0) + j), vr(RL(0) + j) + vr(RL(12) + j), wv=('o', 0), ev={f"v{RL(12)+j}": ('x', 3, 12), f"v{RL(0)+j}": ('x', 3, 0)}), e, d)
            stq(RL(0), 768, ('o', 0))
    def xproc(l, p):
        e = g2[(l, p, 1, 3)].g + md
        if l < 2:
            xb = XF[p % 2]; d = g1[(l + 1, p, 0)].g - 2
            e2 = max(e, g1[(l + 1, p - 2, 6)].g + 1 if p >= 2 else e)
        else: xb = RL(p); d = min(NG - 1, e + C.get('ld', 10)); e2 = e
        for j in range(4):
            t = TM[j % 2]
            V(valu(f"v_mul_f32 v{t}, v{XE_(p)+j}, v{Yr(p,0)+j}", vr(t), vr(XE_(p) + j) + vr(Yr(p, 0) + j), wv=('t0', l, p, j), ev={f"v{XE_(p)+j}": ('x0', p), f"v{Yr(p,0)+j}": ('y', p, 0, 4 * l + 4)}), e, d)
            V(valu(f"v_mul_f32 v{t+1}, v{XO_(p)+j}, v{Yr(p,1)+j}", vr(t + 1), vr(XO_(p) + j) + vr(Yr(p, 1) + j), wv=('t1', l, p, j), ev={f"v{XO_(p)+j}": ('x0', p), f"v{Yr(p,1)+j}": ('y', p, 1, 4 * l + 4)}), e, d)
            V(valu(f"v_cvt_pk_bf16_f32 v{xb+j}, v{t}, v{t+1}", vr(xb + j), vr(t, 2), nb=8, wv=('x', l + 1, p), ev={f"v{t}": ('t0', l, p, j), f"v{t+1}": ('t1', l, p, j)}), e2, d)
        if l == 2 and C['fl'] == 2: flstore(p, e, d)
        elif l == 2:
            s_ = Op(f"buffer_store_dwordx4 v[{xb}:{xb+3}], v{SO}, s[{sO}:{sO+3}], 0 offen offset:{(128*(p//2) if p % 2 else 768 + 128*(p//2)) if C['fl'] else 64*p}" + (f" {C['saux']}" if C['saux'] else ""), 'st', rd=vr(xb, 4) + vr(SO) + srd(sO))
            s_.ev = {q: ('x', 3, p) for q in vr(xb, 4)}; s_.after = vq[-1]; stores.append(s_)
    unp = {}
    if MA:
        for p in range(13): unpack(p); unp[p] = vq[:]; del vq[:]
        hproc(0)
    else:
        for p in range(12): unpack(p)
        hproc(0); unpack(12)
    for l in range(3):
        for p in range(13): xproc(l, p)
        if l < 2: hproc(l + 1)
        if l == 1:
            e = rd[g1[(2, 12, 5)].g].pg + 1; d = rd[g2[(2, 6, 0, 0)].g].pg - 1
            V(valu(f"v_add_u32 v{VR0}, {U4}, v{UR}", vr(VR0), vr(UR), nb=8, wv='far'), e, d)
            V(valu(f"v_add_u32 v{VR1}, {U4}, v{UR8}", vr(VR1), vr(UR8), nb=8, wv='far'), e, d)
    for r in rd:
        if getattr(r, 'far', False): r.ev = {r.rd[0]: 'far'}
        elif r.rd[0] in vr(VR0, 2): r.ev = {r.rd[0]: None}
    for i in range(1, len(vq)): vq[i].e = max(vq[i].e, vq[i - 1].e)
    nxt = INF; cnt = 0
    for o in reversed(vq):
        d = min(o.d, nxt)
        if d == nxt:
            cnt += 1
            if cnt > C['vcap'] and d > o.e: d -= 1; cnt = 1
        else: cnt = 1
        o.late = d; nxt = d
        assert o.late >= o.e or o.e >= NG - 1, (o.text, o.e, o.late)
    if st: em.raw(f"s_memtime s[{STAMP0}:{STAMP0+1}]"); em.raw("s_memrealtime s[98:99]")
    enc = C.get('enc')
    em.raw("s_load_dwordx4 s[4:7], s[0:1], 0"); em.raw("s_load_dwordx4 s[8:11], s[0:1], 16")
    em.raw(f"s_getpc_b64 s[64:65]\nL_pc:\ns_mov_b32 s66, L_end-L_pc\ns_mov_b32 s67, 0x20000\ns_bfe_u32 s68, s2, 0x30003\ns_lshl_b32 s68, s68, 7\nv_lshlrev_b32 v19, 10, v0")
    em.emit(Op(f"buffer_load_dword v19, v19, s[64:67], s68 offen", 'vld', rd=['v19'] + srd(64), wr=['v19']))
    sF = 72; sMa, sMb, sD, sI, sSa, sSb = 62, 63, 69, 70, 71, 76; vF = 15
    P(f"""s_lshr_b32 s14, s2, 8
s_cbranch_scc1 L_end
v_lshrrev_b32 v2, 6, v0
v_and_b32 v1, 63, v0
v_readfirstlane_b32 s{sW}, v2
v_lshrrev_b32 v3, 3, v1
v_lshlrev_b32 v{L16}, 4, v1
v_and_b32 v5, 6, v3
v_lshlrev_b32 v5, 4, v5
v_xor_b32 v5, v5, v{L16}
s_movk_i32 s14, 1536
v_mad_u32_u24 v{XD}, v3, s14, v5
v_lshrrev_b32 v4, 5, v1
s_movk_i32 s14, 6656
v_mad_u32_u24 v{VD}, v4, s14, v{XD}
s_and_b32 s{sT0}, s{sW}, 1
s_lshr_b32 s{sT1}, s{sW}, 1
s_lshl_b32 s{sW1k}, s{sW}, 10
s_lshl_b32 s{sWV}, s{sT1}, 12
s_add_u32 s{sWV}, s{sWV}, s{sW1k}
s_mul_i32 s14, s14, s{sT0}
s_mul_i32 s{sL6b}, s{sT1}, 896
s_add_u32 s14, s14, s{sL6b}
v_add_u32 v{VD}, s14, v{VD}
s_lshl2_add_u32 s15, s2, s{sW}
s_mulk_i32 s15, 13312
s_movk_i32 s{sX+2}, 13312
s_mov_b32 s{sX+3}, s67
s_mov_b32 s{sV+2}, 259584
s_mov_b32 s{sV+3}, s67
s_mov_b32 s{sP+2}, {min(C['XB'],259584)}
s_mov_b32 s{sP+3}, s67
s_lshr_b32 s14, s2, 4
s_lshl_b32 s14, s14, 7
s_lshl_b32 s{sT}, s{sT1}, 17
s_add_u32 s14, s14, s{sT}
v_lshlrev_b32 v{PF1}, 11, v1
s_add_u32 s{sMb}, s{sWV}, {U4}
s_movk_i32 s{sD}, 4096
s_movk_i32 s{sI}, 8192
s_movk_i32 s{sSa}, 0
s_movk_i32 s{sSb}, 896
s_movk_i32 s77, {128*C['kA']}
s_bitcmp1_b32 s2, 3
s_cmovk_i32 s77, {128*C['kB']}
s_cmovk_i32 s{sD}, 2048
s_cmovk_i32 s{sI}, 12288
s_cmovk_i32 s{sSb}, 26624
s_cselect_b32 s{sMa}, s{sMb}, s{sW1k}
s_cselect_b64 s[{sF+2}:{sF+3}], s[{sV+2}:{sV+3}], s[{sX+2}:{sX+3}]
s_cselect_b64 vcc, -1, 0
v_cndmask_b32 v{vF}, v{XD}, v{VD}, vcc
s_cmp_eq_u32 s{sT0}, 1""")
    em.raw("s_waitcnt lgkmcnt(0)")
    if st: em.raw(f"s_memtime s[{STAMP0+2}:{STAMP0+3}]")
    P(f"""s_cselect_b64 s[{sP}:{sP+1}], s[6:7], s[8:9]
s_add_u32 s{sX}, s4, s15
s_addc_u32 s{sX+1}, s5, 0
s_mov_b64 s[{sV}:{sV+1}], s[8:9]
s_mov_b64 s[{sF}:{sF+1}], s[{sX}:{sX+1}]
s_cbranch_vccz L_loop
s_mov_b64 s[{sF}:{sF+1}], s[8:9]""")
    em.emit(Op(f"buffer_load_dword v18, v{PF1}, s[{sP}:{sP+3}], s14 offen", 'vld', rd=vr(PF1) + srd(sP), wr=['v18']))
    xa = (" " + C['xaux']) if C['xaux'] else ""
    em.raw(f"""L_loop:
s_mov_b32 m0, s{sMa}
s_add_u32 s{sMb}, s{sMa}, s{sD}
buffer_load_dwordx4 v{vF}, s[{sF}:{sF+3}], s{sSa} offen{xa} lds
s_mov_b32 m0, s{sMb}
s_add_u32 s{sMa}, s{sMa}, s{sI}
buffer_load_dwordx4 v{vF}, s[{sF}:{sF+3}], s{sSb} offen{xa} lds
s_addk_i32 s{sSb}, 128
s_addk_i32 s{sSa}, 128
s_cmp_lg_u32 s{sSa}, s77
s_cbranch_scc1 L_loop""")
    if C['touch'] == 1: em.raw('; T1', cost=0, nb=0, ws=0)
    todo = list(pieces)
    pf2op = Op(f"buffer_load_dword v17, v{PF1}, s[{sP}:{sP+3}], s14 offen", 'vld', rd=vr(PF1) + srd(sP), wr=['v17'])
    nis = [0]
    def issue_now(q, silent=False):
        n0 = len(em.out)
        for o in q.pre + q.ops: em.emit(o)
        if silent: del em.out[n0:]
        nis[0] += len(q.ops)
        if C['pf2'] == list(q.name) and not MA: em.emit(pf2op)
        if st and not silent and ['P', nis[0]] in C['stamps']:
            i = C['stamps'].index(['P', nis[0]]); em.raw(f"s_memtime s[{STAMP0+6+2*i}:{STAMP0+7+2*i}]")
        q.issued = em.gap; todo.remove(q)
        if C['touch'] and nis[0] - len(q.ops) < C['tA' if MA else 'tB'] <= nis[0]: em.raw('; TA' if MA else '; TB', cost=0, nb=0, ws=0)
    for a in range(C['kA'] if MA else C['kB']):
        for q in ([xp[a], xp[7 + a]] if MA else [vp[(0, a, 0)], vp[(0, a, 1)]]): issue_now(q, True)
    P(f"""s_lshl_b32 s{sWp}, s{sT0}, 10
s_mul_i32 s{sL6a}, s{sT1}, {26624-896}
s_add_u32 s{sL6a}, s{sL6a}, 768
s_sub_u32 s{sL6b}, {53248+768}, s{sL6b}
s_mul_i32 s{sW1664}, s{sW}, 1664
s_add_u32 s{sT}, s{sW1664}, 79872
s_mov_b32 s{sVS[0]}, 0
s_mov_b32 s{sVS[1]}, 26624
s_mov_b32 s{sVS[2]}, 53248""")
    em.raw("s_load_dwordx2 s[12:13], s[0:1], 32")
    P(f"""s_add_u32 s14, s14, {C['XB']}
s_mov_b32 s{sP+2}, {259584-16384*C['SV']}
s_cmp_eq_u32 s{sT0}, 1
s_cselect_b32 s{sP+2}, {259584-16384*C['SU']}, s{sP+2}""")
    if C['pf3'] is not None:
        P(f"""s_mov_b32 s{sP+2}, 169472
s_mov_b32 s{sF}, s{sP}
s_or_b32 s{sF+1}, s{sP+1}, 0x1000000
s_movk_i32 s{sF+2}, 176
s_mov_b32 s{sF+3}, s67
s_lshr_b32 s{sD}, s2, 3
s_lshl_b32 s{sD}, s{sD}, 7
s_mul_i32 s{sI}, s{sT1}, 45056
s_add_u32 s{sD}, s{sD}, s{sI}
s_add_u32 s{sD}, s{sD}, 169472""")
        q = Piece(('pf3',), [], [m0(sW1k, BIASB + 4096)], Op(f"buffer_load_dword v{L16}, s[{sF}:{sF+3}], s{sD} idxen lds", 'dma', rd=[f"v{L16}", 'm0', f"s{sD}"] + srd(sF)), True)
        q.est = C['pf3']; todo.insert(0, q)
    if st: em.raw("s_load_dwordx2 s[60:61], s[0:1], 48")
    P(f"""s_mov_b32 s{sU}, s6
s_mov_b32 s{sU+1}, s7
s_mov_b32 s{sU+2}, 53248
s_mov_b32 s{sU+3}, 0x20000
s_add_u32 s{sU4}, s6, {212992-U4}
s_addc_u32 s{sU4+1}, s7, 0
s_mov_b32 s{sU4+2}, {259584-212992+U4}
s_mov_b32 s{sU4+3}, 0x20000
s_mov_b32 s{sB}, s10
s_mov_b32 s{sB+1}, s11
s_mov_b32 s{sB+2}, 2496
s_mov_b32 s{sB+3}, 0x20000
s_mov_b32 s{sO+2}, 13312
s_mov_b32 s{sO+3}, 0x20000
s_mov_b32 s{sMask}, 0xffff0000
s_mov_b32 s{sLo}, -1
s_mov_b32 s{sLo+1}, 0
v_and_b32 v2, 15, v1
v_lshrrev_b32 v3, 4, v1
v_lshlrev_b32 v6, 4, v3
v_mul_u32_u24 v7, 416, v2
v_add_u32 v{UR}, v7, v6
v_and_b32 v13, 1, v3
v_lshl_add_u32 v7, v13, 3, v7
v_add_u32 v{UR8}, 192, v7
v_mul_u32_u24 v7, 832, v2
v_add_u32 v{SO}, v7, v6
v_xor_b32 v13, 32, v6
v_cmp_gt_u32 vcc, 8, v2
v_cndmask_b32 v13, v13, v{SO}, vcc
v_add_u32 v{T6R}, {V12B}, v13
v_mul_u32_u24 v7, 832, v3
v_lshl_add_u32 v7, v2, 2, v7
v_add_u32 v{PA}, {BIASB}, v7
v_lshrrev_b32 v4, 3, v2
v_and_b32 v5, 3, v2
v_lshl_add_u32 v7, v4, 2, v5
v_lshlrev_b32 v7, 7, v7
v_and_b32 v13, 4, v2
v_lshl_add_u32 v7, v13, 8, v7
v_and_b32 v13, 2, v2
v_lshlrev_b32 v13, 4, v13
v_lshl_or_b32 v13, v4, 6, v13
v_xor_b32 v13, v13, v6
v_add_u32 v13, {VB}, v13
v_add_u32 v{VR0}, v7, v13
v_xor_b32 v{VR1}, 64, v{VR0}
v_subrev_u32 v{VRB}, {VB-U4}, v{VR0}
v_subrev_u32 v{VRB+1}, {VB-U4}, v{VR1}
v_lshrrev_b32 v7, 1, v2
v_lshl_add_u32 v7, v7, 7, s{sW1k}
v_and_b32 v5, 1, v2
v_and_b32 v13, 12, v2
v_lshlrev_b32 v13, 3, v13
v_xor_b32 v13, v13, v6
v_lshlrev_b32 v14, 6, v5
v_xor_b32 v13, v13, v14
v_add_u32 v7, v7, v13
v_mul_u32_u24 v14, 49152, v5
v_add_u32 v{XA0}, v7, v14
v_lshlrev_b32 v14, 12, v5
v_sub_u32 v{XAE}, v7, v14
v_add_u32 v{XAE}, 4096, v{XAE}
v_xor_b32 v7, 64, v7
v_add_u32 v{XAO}, v7, v14
v_mov_b32 v7, 0x3f80""")
    if C['fl']: P(f"v_mul_u32_u24 v14, 768, v5\nv_sub_u32 v{SO}, v{SO}, v14\ns_mov_b32 s62, 0x55555555\ns_mov_b32 s63, s62")
    for l in range(3):
        P(f"""v_cmp_eq_u32 vcc, {l}, v3
v_cndmask_b32 v13, 0, v7, vcc
v_accvgpr_write_b32 a{BG(l)+1}, 0
v_accvgpr_write_b32 a{BG(l)+4}, v13
v_lshlrev_b32 v13, 16, v13
v_accvgpr_write_b32 a{BG(l)+5}, 0
v_accvgpr_write_b32 a{BG(l)}, v13""")
    em.raw("s_waitcnt lgkmcnt(0)")
    P(f"s_add_u32 s{sO}, s12, s15\ns_addc_u32 s{sO+1}, s13, 0")
    if C['touch'] == 2: em.raw('; T1', cost=0, nb=0, ws=0)
    em.raw('; SPLIT', cost=0, nb=0, ws=0)
    if enc == 'split': em.raw("s_memrealtime s[96:97]\ns_waitcnt lgkmcnt(0)")
    def smem():
        if not (C['SU'] or C['SV']): return
        P(f"""s_lshr_b32 s{sD}, s2, 3
s_lshl2_add_u32 s{sD}, s{sD}, s{sW}
s_lshl_b32 s{sD}, s{sD}, 7
s_add_u32 s{sF}, s6, s{sD}
s_addc_u32 s{sF+1}, s7, 0
s_add_u32 s{sF+2}, s8, s{sD}
s_addc_u32 s{sF+3}, s9, 0""")
        for i in range(C['SV']): em.raw(f"s_load_dword s{sD}, s[{sF+2}:{sF+3}], {259584 - 16384*(C['SV']-i)}", nb=8)
        for i in range(C['SU']): em.raw(f"s_load_dword s{sD}, s[{sF}:{sF+1}], {259584 - 16384*(C['SU']-i)}", nb=8)
    def xread(r):
        for q in r.pieces: r.needs.append(q.ops[-1])
        em.emit(r)
    if MA:
        for a in range(C['kA'], 6): issue_now(xp[a]); issue_now(xp[7 + a])
        issue_now(xp[6])
        if C['XB'] < 259584 and C['pf2'] is None: em.emit(Op(f"buffer_load_dword v17, v{PF1}, s[{sP}:{sP+3}], s14 offen", 'vld', rd=vr(PF1) + srd(sP), wr=['v17']))
        issue_now(bp)
        smem()
        while nis[0] < C['pfat']: issue_now([q for q in todo if q.est < 0][0])
        em.raw("s_waitcnt lgkmcnt(0)")
        prev = None
        for p in list(range(1, 12)) + [0, 12, None]:
            if p is not None:
                for r in xr2[p]: xread(r)
            if nis[0] < C['npro']: issue_now([q for q in todo if q.est < 0][0])
            if prev is not None:
                for o in unp[prev]: em.emit(o)
            prev = p
    else:
        smem()
        for c in C['xearly']: issue_now(xp[c])
        for q in [q for q in todo if not q.private and q.name[0] != 'u' and (q is bp or q.name[1] == 0)]: issue_now(q)
    while nis[0] < C['npro']:
        q = [q for q in todo if q.est < 0][0]; assert not q.war; issue_now(q)
    if not MA: em.raw("s_waitcnt lgkmcnt(0)")
    if C['touch']: em.raw('s_mov_b64 vcc, 0')
    em.raw('; MAIN', cost=0, nb=0, ws=0)
    freed = 0; slack = []
    def barop(g):
        nd = bar_needs(g)
        for q in nd: assert q.issued is not None, f"piece {q.name} not issued at barrier {g} (need {q.need})"
        return Op("s_barrier", 'bar', needs=[q.ops[-1] for q in nd], cost=2), nd
    def elig(q, g):
        if q.est > g: return False
        for o in q.war:
            for r in o.readers:
                if r.seq is None or r.seq >= (em.lg_done if o.private else freed): return False
        return True
    stamps = {}
    if st:
        for i, key in enumerate(C['stamps']):
            if key[0] != 'P': stamps[start[tuple(key)]] = f"s_memtime s[{STAMP0+6+2*i}:{STAMP0+7+2*i}]"
    if isinstance(enc, list): stamps[start[tuple(enc)]] = "s_memrealtime s[96:97]"
    cur = None; curq = []; lastd = -INF; vi = 0; fill = []; T = 0; tl = {}
    for g in range(-1, NG):
        em.gap = g; o0 = len(em.out); shadow = g >= 0
        if g >= 0:
            if g in stamps: em.raw(stamps[g], nb=8)
            em.emit(mf[g])
        om = len(em.out)
        if g in bars or g == -1:
            b, nd = barop(g)
            em.emit(b); freed = em.lg_done; shadow = False
            slack += [(g - q.issued, q.name) for q in nd if q.issued >= 0]
            if g == -1 and enc == 'bar0': em.raw("s_memrealtime s[96:97]")
            if g == -1 and st: em.raw(f"s_memtime s[{STAMP0+4}:{STAMP0+5}]")
        must = (bar_needs(g + 1) if g + 1 in bars else []) + [q for r in rgap[g + 1] for q in r.pieces if q.private]
        while g < G20 and any(q.issued is None for q in must):
            if cur is None: cur = [q for q in todo if elig(q, g)][0]; curq = list(cur.pre) + list(cur.ops); todo.remove(cur)
            for o in curq: em.emit(o)
            if C['pf2'] == list(cur.name) and not MA: em.emit(pf2op)
            cur.issued = g; cur = None; curq = []; lastd = g; shadow = False
        lg, vm = em.need(mf[g + 1]) if 0 <= g < NG - 1 else (0, 0)
        if g + 1 in bars:
            vm = em.need(barop(g + 1)[0])[1]
            if g + 2 < NG: lg = max(lg, em.need(mf[g + 2])[0])
            lg = max(lg, em.lg_done + 1) if em.lg_done < len(em.lg) and em.lg[em.lg_done].gap <= g - em.lg_slack else lg
        if lg or vm: em.wait(lg, vm); shadow = False
        sp = C['sp0'] if g < G20 else (C.get('sp1', C['sp0']) if g < G20 + C['spend'] else C['sp'])
        if cur is None:
            el = [q for q in todo if elig(q, g)]
            if el: cur = el[0]; curq = list(cur.pre) + list(cur.ops); todo.remove(cur)
        if cur and curq[0].kind == 'salu' and (shadow or g < G20): em.emit(curq.pop(0))
        for r in rgap[g + 1]:
            if g == -1 and r.pieces[0].private and C['post']:
                for o in curq: em.emit(o)
                if cur: cur.issued = g; cur = None; curq = []
                for _ in range(C['post'] - 1): issue_now([q for q in todo if q.est < 0][0])
                C['post'] = 0
            for q in r.pieces:
                if q.private: r.needs.append(q.ops[-1])
            em.emit(r)
        nf = len(rgap[g + 1]) + (2 if g in bars else 0)
        if cur and curq[0].kind == 'dma' and g - lastd >= sp and (g >= C.get('qend', G20) or len(em.vm) - em.vm_done + (C['pfw'] if pf2op.seq is not None and pf2op.seq >= em.vm_done else 0) < C['Q']):
            em.emit(curq.pop(0)); lastd = g; nf += 2
            if not curq:
                if C['pf2'] == list(cur.name) and not MA: em.emit(pf2op)
                cur.issued = g; cur = None
        elif stores and stores[0].after.gap is not None:
            em.emit(stores.pop(0)); nf += 4
        while vi < len(vq) and (g == NG - 1 or (vq[vi].e <= g and (nf < 2 or vq[vi].late <= g or (C.get('vs') and g == C['vs'][0] and len(vq) - vi > C['vs'][1]) or (g < G20 and nf < C['ufill'])))):
            em.emit(vq[vi]); vi += 1; nf += 1
            if g == NG - 1 and stores and stores[0].after.gap is not None: em.emit(stores.pop(0))
        c = sum(x[2] for x in em.out[o0:]) - (1 if g >= 0 and len(em.out) > om and em.out[om][0].startswith('s_') and not em.out[om][0].startswith('s_barrier') else 0)
        REMV[(C['mode'], g)] = len(vq) - vi
        fill.append(c); tl[g] = T; T += max(4, c)
    assert not todo and cur is None and not stores and vi == len(vq)
    if st:
        ns = 3 + len(C['stamps'])
        em.raw(f"s_memtime s[{STAMP0+2*ns}:{STAMP0+2*ns+1}]"); ns += 1
        em.raw("s_waitcnt vmcnt(0)")
        em.raw(f"s_memtime s[{STAMP0+2*ns}:{STAMP0+2*ns+1}]"); ns += 1
        assert STAMP0 + 2 * ns <= 98
        em.raw("s_memrealtime s[100:101]")
        em.raw("s_waitcnt lgkmcnt(0)")
        em.raw(f"s_mov_b32 s16, s60\ns_mov_b32 s17, s61\ns_mov_b32 s18, 65536\ns_mov_b32 s19, 0x20000")
        em.raw(f"s_lshl_b32 s20, s2, 2\ns_add_u32 s20, s20, s{sW}\ns_lshl_b32 s20, s20, 6\nv_mov_b32 v1, s20\ns_mov_b64 exec, 1")
        for i in range(12): em.raw(f"v_mov_b32 v0, s{STAMP0+2*i}\ns_nop 1\nbuffer_store_dword v0, v1, s[16:19], 0 offen offset:{4*i}\ns_nop 1")
    if enc:
        if enc == 'end': em.raw("s_memrealtime s[96:97]")
        em.raw("s_waitcnt vmcnt(0)")
        if enc == 'drain': em.raw("s_memrealtime s[96:97]")
        em.raw("s_waitcnt lgkmcnt(0)\nL_sp:\ns_memrealtime s[100:101]\ns_waitcnt lgkmcnt(0)\ns_sub_u32 s100, s100, s96\ns_cmp_lt_u32 s100, 2000\ns_cbranch_scc1 L_sp")
    if C['verbose']:
        print("slots", T, "waits", em.nwait, "nops", em.nnop, "bytes", sum(x[3] for x in em.out), "bars", barl)
        print("phase slots", {k: tl[v] for k, v in start.items() if k[2] == 0 and k[0] == 'G2'})
        print("fill", "".join(str(min(c, 9)) for c in fill))
        print("slack", [(s_, n) for s_, n in slack])
    return [(t, gap) for (t, gap, c, nb) in em.out]

def pads(L):
    import subprocess, re
    L = "\n".join(L).split("\n")
    o = []
    for t in L:
        if t == '; T1':
            o += ["s_mov_b64 vcc, -1", "s_bfe_u32 s77, s2, 0x10003", f"s_lshl2_add_u32 s77, s77, s{sW}"]
            for w in range(8): o += [f"s_cmp_eq_u32 s77, {w}", f"s_cbranch_scc1 @{w}"]
            o.append("L_rT:")
        elif t not in ('; TA', '; TB'):
            o.append(t)
            if t in ('L_B:', 'L_M:'): o.append("s_cbranch_vccnz L_rT")
    open('pad.s', 'w').write(re.sub(r"@\d", "L_end", "\n".join(o)) + "\n")
    subprocess.run("clang -target amdgcn-amd-amdhsa -mcpu=gfx950 -c pad.s -o pad.o", shell=True, check=True)
    ad = [int(m.group(1), 16) for m in re.finditer(r"// ([0-9A-F]{12}):", subprocess.run("llvm-objdump -d pad.o", shell=True, capture_output=True, text=True).stdout)]
    isins = lambda t: not (t.startswith(';') or t.startswith('.') or t.endswith(':') or not t)
    idx = [i for i, t in enumerate(o) if isins(t)]
    assert len(idx) == len(ad), (len(idx), len(ad))
    iB, iM = o.index('L_B:'), o.index('L_M:')
    nB = idx.index(iB + 1)
    tA = ['L_M']; tB = ['L_B']; ins = {}; sh = 0x300; pg = 4096
    while pg < ad[-1] + sh:
        if pg - 4096 < ad[nB] + sh <= pg:
            k = (pg - ad[nB] - sh) // 4; ins[iB] = ["s_endpgm"] * k; sh += 4 * k; pg += 4096; continue
        c = [n for n in range(len(ad)) if pg <= ad[n] + sh < pg + 60]
        g = [n for n in c if o[idx[n - 1]].startswith('v_mfma') and not o[idx[n]].startswith('s_')]
        n = (g or c)[0]; i = idx[n]; nm = f"L_pad{pg//4096}"
        if "s_mov_b64 vcc, s[62:63]" in o[:i]: print("Error: page crossing in last phase"); break
        if i < iB or i > iM: tA.append(nm)
        if i > iB: tB.append(nm)
        ins[i] = [nm + ":", "s_cbranch_vccnz L_rT"]; sh += 4
        pg += 4096
    print("merge pads", tA, tB, hex(ad[-1] + sh))
    tg = (tA[::-1] + ['L_rT'] * 4)[:4] + (tB[::-1] + ['L_rT'] * 4)[:4]
    o2 = []
    for i, t in enumerate(o):
        o2 += ins.get(i, [])
        o2.append(re.sub(r"@(\d)", lambda m: tg[int(m.group(1))], t))
    return o2

def compose(kw):
    ab = kw.pop('B', None)
    if kw.get('ms'):
        gen(**{**kw, 'verbose': False}); gen(**{**kw, **ab, 'mode': 'B', 'verbose': False}); kw['vs'] = [kw['ms'], min(REMV[('A', kw['ms'])], REMV[('B', kw['ms'])])]
    A = gen(**kw)
    L = ["; DCN-v2 cross network, generated by gen/v2.py", "; @launch grid=(256,1,1) block=(256,1,1) lds=163840",
         '.amdgcn_target "amdgcn-amd-amdhsa--gfx950"', ".text", f".globl {NAME}_kernel"] + ([".p2align 12"] if kw.get('al', 1) else []) + [".p2align 8", f".type {NAME}_kernel,@function", f"{NAME}_kernel:"]
    if ab is None: L += [t for t, g in A]
    else:
        Bv = gen(**{**kw, **ab, 'mode': 'B'})
        sp = [t for t, g in A].index('; SPLIT')
        assert A[:sp] == Bv[:sp]
        k = 0
        while A[-1 - k] == Bv[-1 - k]: k += 1
        while not A[-k][0].startswith('v_mfma'): k -= 1
        k -= 1
        print("merge at gap", A[-k][1])
        mb = [t for t, g in Bv].index('; MAIN')
        L += [t for t, g in A[:sp]] + ["s_bitcmp1_b32 s2, 3", "s_cbranch_scc0 L_A"] + [t for t, g in Bv[sp:mb]] + ["s_branch L_B", "L_A:"]
        L += [t for t, g in A[sp:-k]] + ["s_branch L_M", "L_B:"]
        L += [t for t, g in Bv[mb:-k]] + ["L_M:"] + [t for t, g in A[-k:]]
    L.append("L_end:\ns_endpgm")
    if kw.get('touch'): L = pads(L)
    L.append(f'.section .rodata,"a"\n.p2align 6\n.amdhsa_kernel {NAME}_kernel\n  .amdhsa_next_free_vgpr 512\n  .amdhsa_next_free_sgpr 102\n  .amdhsa_accum_offset 256\n  .amdhsa_group_segment_fixed_size 0\n  .amdhsa_kernarg_size 56\n  .amdhsa_user_sgpr_count 2\n  .amdhsa_user_sgpr_kernarg_segment_ptr 1\n  .amdhsa_system_sgpr_workgroup_id_x 1\n.end_amdhsa_kernel')
    return "\n".join(L) + "\n"

if __name__ == "__main__":
    kw = json.loads(sys.argv[2]) if len(sys.argv) > 2 else {}
    kw['verbose'] = True
    open(sys.argv[1], "w").write(compose(kw))
```

```python
import sys, json
from sched import *
from fast import Pro, valu, salu, srd, NAME
U4 = 53248; VB = 77824; L6B = 126976; V12B = 139264; BIASB = 152576
Yr = lambda p, t: 8 * p + 4 * t
XE_ = lambda p: 104 + 8 * p
XO_ = lambda p: 108 + 8 * p
HA = lambda i: 208 + 4 * i
XF = [236, 240]; TM = [244, 246]
UR, UR8, VR0, VR1, T6R, L16, VD, SO = range(248, 256)
XD, XA0, XAE, XAO, PA, PF1, PF2 = 8, 9, 10, 11, 12, 16, 17
PA = 243; VRB = 20
sW = 3; sX = 16; sO = 20; sV = 24; sU = 28; sU4 = 32; sB = 36; sP = 40
sVS = [44, 45, 46]; sW1k = 47; sWV = 48; sWp = 49; sW1664 = 50; sL6a = 51; sL6b = 52; sT = 53; sMask = 54; sLo = 56; sT0 = 58; sT1 = 59
STAMP0 = 78
DEF = dict(stamps=None, D=16, D0=8, NA=18, slack=7, sp=3, sp0=1, npro=12, lag=2, xaux="", saux="sc0 sc1", waux="", pf=True,
           bar0=14, bar0off=0, baroff=0, barper=30, vcap=2, mdist=3, u4est=4, verbose=False, pf2at=10, last_bar=20, mode='A', Dx=5, XB=262144, SU=0, SV=0, pfat=13, xearly=[], pf2=None, xbars=[], al=1, Q=99, Pat=None, ufill=3, pfw=5, post=0, pf3=None, spend=16, touch=0, fl=0, kB=6, kA=6, tA=17, tB=27)

REMV = {}
class Piece:
    def __init__(s, name, region, pre, op, private=False):
        s.name = name; s.region = region; s.pre = pre; s.ops = op if isinstance(op, list) else [op]; s.private = private
        s.readers = []; s.need = INF; s.est = -INF; s.issued = None; s.war = []
def dma(voff, s, soff, off, aux=""):
    so = "0" if soff is None else soff
    return Op(f"buffer_load_dwordx4 v{voff}, s[{s}:{s+3}], {so} offen" + (f" offset:{off}" if off else "") + (f" {aux}" if aux else "") + " lds",
              'dma', rd=[f"v{voff}", 'm0'] + srd(s) + ([] if soff is None else [soff]))
def m0(base, imm):
    assert imm >= 0
    if imm == 0: return salu(f"s_mov_b32 m0, s{base}", wr=['m0'], rd=[f"s{base}"])
    return salu(f"s_add_u32 m0, s{base}, {imm}", wr=['m0'], rd=[f"s{base}"], nb=8)
def dsr(p, d, n, addr, off, wv, pieces):
    mn = {4: 'ds_read_b128', 2: 'ds_read_b64'}[n]
    assert 0 <= off < 65536
    o = Op(f"{mn} {p}[{d}:{d+n-1}], v{addr} offset:{off}", 'dsr', rd=[f"v{addr}"], wr=[f"{p}{d+i}" for i in range(n)])
    o.wv = wv; o.pieces = pieces
    for q in pieces: q.readers.append(o)
    return o

def gen(**kw):
    C = dict(DEF); C.update(kw)
    NA = C['NA']; REM = lambda p: 4 * NA + 6 * p; HB = lambda s: 4 * NA + 78 + 4 * s; BG = lambda l: 4 * NA + 90 + 6 * l
    assert BG(3) <= 256
    em = Emitter(lg_slack=C['slack']); P = Pro(em); W = C['waux']
    st = C['stamps'] is not None
    MA = C['mode'] == 'A'; XA = lambda p: BG(3) + 4 * p
    xslot = lambda c: 2 * c if c <= 6 else 2 * (c - 7) + 1
    xp = {c: Piece(('x', c), [(4096 * xslot(c), 4096 * xslot(c) + 4096)], [m0(sW1k, 4096 * xslot(c) - 128 * c)], dma(XD, sX, None, 128 * c, C['xaux']), True) for c in range(13)}
    up = {}
    for k in range(64):
        if k < 52:
            a = 4096 * (k % 13); pre = []
            if k % 13 == 0 and k:
                pre = [salu(f"s_add_u32 s{sU}, s{sU}, 53248\ns_addc_u32 s{sU+1}, s{sU+1}, 0", wr=[f"s{sU}", f"s{sU+1}"], nb=12)]
                pre[0].cost = 2; pre[0].wv = k // 13
            up[k] = Piece(('u', k), [(a, a + 4096)], pre + [m0(sW1k, a)], dma(L16, sU, 'm0', 0, W))
            up[k].ops[0].ev = {f"s{sU}": k // 13 or None}
        else:
            a = U4 + 4096 * (k - 52)
            up[k] = Piece(('u', k), [(a, a + 4096)], [m0(sW1k, a)], dma(L16, sU4, 'm0', 0, W))
    vp = {}; l6 = {}; v12 = {}
    def vsl(l, a):
        if l == 0: return VB + 12288 * (a - 2)
        return VB + 12288 * ((6 * l + a + 2) % 4)
    for l in range(3):
        for a in range(6):
            sl = vsl(l, a)
            for s in range(3):
                pre = [salu(f"s_mov_b32 s{sVS[s]}, {86528*l + 26624*s}", wr=[f"s{sVS[s]}"], nb=8)] if (a == 0 and l > 0) else []
                vp[(l, a, s)] = Piece(('v', l, a, s), [(sl + 2048 * s, sl + 2048 * s + 2048), (sl + 6144 + 2048 * s, sl + 6144 + 2048 * s + 2048)],
                                      pre + [m0(sWV, sl + 2048 * s - 128 * a)], dma(VD, sV, f"s{sVS[s]}", 128 * a, W))
                if pre: pre[0].wv = l
                vp[(l, a, s)].ops[0].ev = {f"s{sVS[s]}": l or None}
        b = L6B + 6144 * (l % 2)
        adv = lambda r: [salu(f"s_add_u32 s{r}, s{r}, 86528", wr=[f"s{r}"], nb=8)] if l else []
        l6[(l, 0)] = Piece(('l6', l, 0), [(b, b + 4096)], adv(sL6a) + [m0(sW1k, b)], dma(VD, sV, f"s{sL6a}", 0, W))
        l6[(l, 1)] = Piece(('l6', l, 1), [(b + 4096, b + 6144)], adv(sL6b) + [m0(sWp, b + 4096)], dma(VD, sV, f"s{sL6b}", 0, W))
        b = V12B + 6656 * (l % 2)
        v12[l] = Piece(('v12', l), [(b, b + 6656)], adv(sT) + [m0(sW1664, b)], [dma(L16, sV, f"s{sT}", 0, W), dma(L16, sV, f"s{sT}", 640, W)])
    bp = Piece(('b',), [(BIASB, BIASB + 4096)], [m0(sW1k, BIASB)], dma(L16, sB, f"s{sW1k}", 0, W))
    seq = [('G1', 0, p) for p in range(13)]
    lag = C['lag']
    for l in range(3):
        seq.append(('G2', l, (0, 1)))
        done = 0
        for p in range(1, 13):
            if p > 1: seq.append(('G2', l, (p,)))
            if l < 2 and p - lag >= 0: seq.append(('G1', l + 1, p - lag)); done = p - lag + 1
        if l < 2: seq += [('G1', l + 1, p) for p in range(done, 13)]
    mf = []; rd = []; g1 = {}; g2 = {}; start = {}; ring = [0]
    def rslot():
        r = 4 * (ring[0] % NA); ring[0] += 1; return r
    def mfma(d, a, bp_, b, c, wv, ev):
        cs = c if isinstance(c, str) else rng('v', d, 4)
        cr = [] if isinstance(c, str) else vr(d, 4)
        br = [f"{bp_}{b+i}" for i in range(4)]
        m = Op(f"v_mfma_f32_16x16x32_bf16 {rng('v', d, 4)}, a[{a}:{a+3}], {bp_}[{b}:{b+3}], {cs}", 'mfma16', rd=ar(a, 4) + br + cr, wr=vr(d, 4), srcc=cr)
        m.wv = wv; m.ev = ev; m.g = len(mf); mf.append(m); return m
    for (kd, l, p) in seq:
        start[(kd, l, p if kd == 'G1' else p[0])] = len(mf)
        if kd == 'G1':
            xb = XO_(p) if l == 0 else XF[p % 2]; xk = 'v'
            if l == 0 and MA: xb = XA(p); xk = 'a'
            for i in range(7):
                a = rslot(); s, t = i >> 1, i & 1
                if i == 6: r = dsr('a', a, 4, T6R, 6656 * (l % 2) + 64 * p, ('V', l, p, i), [v12[l]])
                else:
                    c, h = (p >> 1, p & 1) if t == 0 else (6 + ((p + 1) >> 1), (p + 1) & 1)
                    if c == 6: base = L6B + 6144 * (l % 2); pc = l6[(l, s >> 1)]
                    else:
                        aa = c if c < 6 else c - 7
                        base = vsl(l, aa) + (6144 if c > 6 else 0); pc = vp[(l, aa, s)]
                    if base < VB: r = dsr('a', a, 4, VRB + h, base + 2048 * s - U4, ('V', l, p, i), [pc])
                    else: r = dsr('a', a, 4, VR1 if h else VR0, base + 2048 * s - VB, ('V', l, p, i), [pc])
                ev = {q: ('V', l, p, i) for q in ar(a, 4)}; ev.update({f'{xk}{xb+z}': ('x', l, p) for z in range(4)})
                if p: ev.update({q: ('h', l, i, p) for q in vr(HA(i), 4)})
                g1[(l, p, i)] = mfma(HA(i), a, xk, xb, None if p else "0", ('h', l, i, p + 1), ev); rd.append(r)
        else:
            for s in range(4):
                for b in p:
                    B = 13 * l + b; lo = 6656 * B
                    pcs = [up[k] for k in range(lo // 4096, (lo + 6655) // 4096 + 1)]
                    far = B >= 32
                    off = lo - 212992 if far else lo % 53248
                    for t in range(2):
                        first = l == 0 and s == 0
                        if s < 3:
                            a = rslot(); r = dsr('a', a, 4, VR0 if far else UR, off + 208 * t + 64 * s, ('U', l, b, t, s), pcs)
                            ev = {q: ('U', l, b, t, s) for q in ar(a, 4)}; hb = HB(s); ev.update({q: ('hb', l, s) for q in ar(hb, 4)})
                        else:
                            r = dsr('a', REM(b) + 4 * t, 2, VR1 if far else UR8, off + 208 * t, ('U', l, b, t, s), pcs)
                            a = REM(b) + 2 * t; hb = BG(l) + 2 - 2 * t
                            ev = {q: ('U', l, b, t, s) for q in ar(REM(b) + 4 * t, 2)}; ev.update({q: ('P', b) for q in ar(REM(b) + 2, 2)})
                            ev.update({q: ('hb', l, 3) for q in ar(BG(l) + 2, 2)})
                        r.far = far
                        if not first: ev.update({q: ('y', b, t, 4 * l + s) for q in vr(Yr(b, t), 4)})
                        g2[(l, b, t, s)] = mfma(Yr(b, t), a, 'a', hb, "1.0" if first else None, ('y', b, t, 4 * l + s + 1), ev); rd.append(r)
    NG = len(mf)
    G20 = start[('G2', 0, 0)]
    def Dist(i): return C['D0'] if i < G20 + 16 else min(C['D'], C['D0'] + (i - G20 - 16) // 4)
    rgap = [[] for _ in range(NG + 1)]
    xr2 = {}; xlate = []
    for i, r in enumerate(rd):
        if i < G20 and i % 7 == 0:
            p = i // 7
            ad, off = (XA0, 0) if p == 0 else ((XAE, 4096 * (p - 1)) if p % 2 == 0 else (XAO, 4096 * (p - 1)))
            x = dsr('v', XO_(p), 4, ad, off, ('x', 0, p), [xp[p >> 1], xp[6 + ((p + 1) >> 1)]])
            if MA:
                xr2[p] = [x, dsr('a', XA(p), 4, ad, off, ('x', 0, p), x.pieces)]
                for z in xr2[p]: z.pg = -2
            else: x.pg = max(-1, i - C['Dx']); xlate.append(x)
        r.pg = max(-1, i - Dist(i)); rgap[r.pg + 1].append(r)
    for p in range(13):
        o = Op(f"ds_read2_b32 a[{REM(p)+2}:{REM(p)+3}], v{PA} offset0:{16*p} offset1:{16*p}", 'dsr', rd=vr(PA), wr=ar(REM(p) + 2, 2))
        o.wv = ('P', p); o.pieces = [bp]; bp.readers.append(o); o.pg = (G20 - 40 + 3 * p if MA else -1) if C['Pat'] is None else C['Pat'][0] + C['Pat'][1] * p
        if o.pg >= 0: rgap[o.pg + 1].append(o)
        else: rgap[0].insert(0, o)
    for x in xlate: rgap[x.pg + 1].append(x)
    pieces = list(xp.values()) + list(up.values()) + list(vp.values()) + list(l6.values()) + list(v12.values()) + [bp]
    for q in pieces: q.need = min((r.pg + 0.001 * rgap[r.pg + 1].index(r) if r.pg >= -1 else -2) for r in q.readers)
    pieces.sort(key=lambda q: q.need)
    ov = lambda a, b: any(x0 < y1 and y0 < x1 for (x0, x1) in a.region for (y0, y1) in b.region)
    for i, q in enumerate(pieces): q.war = [o for o in pieces[:i] if ov(o, q)]
    for k in range(52, 64): up[k].est = start[('G1', 2, C['u4est'])]
    bars = set()
    g = C['bar0off'] + C['bar0'] - C['D0'] - 1
    while g < G20 + C['baroff'] - 8: bars.add(g); g += C['bar0']
    if C.get('bars0') is not None: bars = set(C['bars0'])
    for l in range(2):
        g0 = start[('G2', l, 0)] + C['baroff']; n = round(195 / C['barper'])
        for i in range(n): bars.add(g0 + round(i * 195 / n))
    bars.add(start[('G2', 2, 0)] + C['baroff'])
    if C['last_bar'] is not None: bars.add(start[('G2', 2, 0)] + C['baroff'] + C['last_bar'])
    bars |= set(C['xbars'])
    barl = sorted(bars)
    def bar_needs(g):
        nx = min([b for b in barl if b > g] + [NG])
        return [q for q in pieces if not q.private and g <= q.need < nx]
    vq = []
    md = C['mdist']
    def V(op, e, d): op.e = e; op.d = d; vq.append(op)
    def unpack(p):
        for j in range(4):
            e = g1[(0, p, 6)].g + 1; d = G20 + 10 + 8 * p
            V(valu(f"v_lshlrev_b32 v{XE_(p)+j}, 16, v{XO_(p)+j}", vr(XE_(p) + j), vr(XO_(p) + j), wv=('x0', p), ev={f"v{XO_(p)+j}": ('x', 0, p)}), e, d)
            V(valu(f"v_and_b32 v{XO_(p)+j}, s{sMask}, v{XO_(p)+j}", vr(XO_(p) + j), vr(XO_(p) + j), wv=('x0', p), ev={f"v{XO_(p)+j}": ('x', 0, p)}), e, d)
    def hproc(l):
        for s in range(3):
            e = g1[(l, 12, 2 * s + 1)].g + md; d = g2[(l, 0, 0, s)].g - 2
            for j in range(4):
                a, b = HA(2 * s) + j, HA(2 * s + 1) + j
                V(valu(f"v_cvt_pk_bf16_f32 v{a}, v{a}, v{b}", vr(a), vr(a) + vr(b), nb=8, wv=('hc',), ev={f"v{a}": ('h', l, 2 * s, 13), f"v{b}": ('h', l, 2 * s + 1, 13)}), e, d)
            for j in range(4):
                a = HA(2 * s) + j
                V(valu(f"v_accvgpr_write_b32 a{HB(s)+j}, v{a}", ar(HB(s) + j), vr(a), nb=8, wv=('hb', l, s), ev={f"v{a}": ('hc',)}), e, d)
        e = g1[(l, 12, 6)].g + md; d = g2[(l, 0, 0, 3)].g - 2; a = HA(6)
        for j in range(2): V(valu(f"v_cvt_pk_bf16_f32 v{a+2*j}, v{a+2*j}, v{a+2*j+1}", vr(a + 2 * j), vr(a + 2 * j, 2), nb=8, wv=('hc',), ev={q: ('h', l, 6, 13) for q in vr(a + 2 * j, 2)}), e, d)
        for j in range(2): V(valu(f"v_cndmask_b32_e64 v{a+2*j}, 0, v{a+2*j}, s[{sLo}:{sLo+1}]", vr(a + 2 * j), vr(a + 2 * j), nb=8, wv=('hc',)), e, d)
        for j in range(2): V(valu(f"v_accvgpr_write_b32 a{BG(l)+2+j}, v{a+2*j}", ar(BG(l) + 2 + j), vr(a + 2 * j), nb=8, wv=('hb', l, 3)), e, d)
    stores = []
    RL = lambda p: HA(p % 7) if C['fl'] < 2 else (HA((p - 1) % 7) if p else XF[0])
    def flstore(p, e, d):
        def stq(r, off, tag):
            s_ = Op(f"buffer_store_dwordx4 v[{r}:{r+3}], v{SO}, s[{sO}:{sO+3}], 0 offen offset:{off}" + (f" {C['saux']}" if C['saux'] else ""), 'st', rd=vr(r, 4) + vr(SO) + srd(sO))
            s_.ev = {q: tag for q in vr(r, 4)}; s_.after = vq[-1]; stores.append(s_)
        if p == 0: return
        V(salu("s_mov_b64 vcc, s[62:63]" if p == 1 else "s_not_b64 vcc, vcc", wr=['vcc']), e, d)
        b, o = (p, p - 1) if p % 2 else (p - 1, p)
        dst = (XF[1] if p == 1 else RL(o)) if p % 2 else RL(b)
        for j in range(4):
            V(valu(f"v_cndmask_b32_dpp v{dst+j}, v{RL(b)+j}, v{RL(o)+j}, vcc quad_perm:[1,0,3,2] row_mask:0xf bank_mask:0xf", vr(dst + j), vr(RL(b) + j) + vr(RL(o) + j), nb=8,
                   wv=('o', p), ev={f"v{RL(b)+j}": ('x', 3, b), f"v{RL(o)+j}": ('x', 3, o)}), e, d)
        stq(dst, 128 * (p // 2) if p % 2 else 768 + 128 * (p // 2), ('o', p))
        if p == 12:
            for j in range(4): V(valu(f"v_cndmask_b32 v{RL(0)+j}, v{RL(12)+j}, v{RL(0)+j}, vcc", vr(RL(0) + j), vr(RL(0) + j) + vr(RL(12) + j), wv=('o', 0), ev={f"v{RL(12)+j}": ('x', 3, 12), f"v{RL(0)+j}": ('x', 3, 0)}), e, d)
            stq(RL(0), 768, ('o', 0))
    def xproc(l, p):
        e = g2[(l, p, 1, 3)].g + md
        if l < 2:
            xb = XF[p % 2]; d = g1[(l + 1, p, 0)].g - 2
            e2 = max(e, g1[(l + 1, p - 2, 6)].g + 1 if p >= 2 else e)
        else: xb = RL(p); d = min(NG - 1, e + C.get('ld', 10)); e2 = e
        for j in range(4):
            t = TM[j % 2]
            V(valu(f"v_mul_f32 v{t}, v{XE_(p)+j}, v{Yr(p,0)+j}", vr(t), vr(XE_(p) + j) + vr(Yr(p, 0) + j), wv=('t0', l, p, j), ev={f"v{XE_(p)+j}": ('x0', p), f"v{Yr(p,0)+j}": ('y', p, 0, 4 * l + 4)}), e, d)
            V(valu(f"v_mul_f32 v{t+1}, v{XO_(p)+j}, v{Yr(p,1)+j}", vr(t + 1), vr(XO_(p) + j) + vr(Yr(p, 1) + j), wv=('t1', l, p, j), ev={f"v{XO_(p)+j}": ('x0', p), f"v{Yr(p,1)+j}": ('y', p, 1, 4 * l + 4)}), e, d)
            V(valu(f"v_cvt_pk_bf16_f32 v{xb+j}, v{t}, v{t+1}", vr(xb + j), vr(t, 2), nb=8, wv=('x', l + 1, p), ev={f"v{t}": ('t0', l, p, j), f"v{t+1}": ('t1', l, p, j)}), e2, d)
        if l == 2 and C['fl'] == 2: flstore(p, e, d)
        elif l == 2:
            s_ = Op(f"buffer_store_dwordx4 v[{xb}:{xb+3}], v{SO}, s[{sO}:{sO+3}], 0 offen offset:{(128*(p//2) if p % 2 else 768 + 128*(p//2)) if C['fl'] else 64*p}" + (f" {C['saux']}" if C['saux'] else ""), 'st', rd=vr(xb, 4) + vr(SO) + srd(sO))
            if C.get('flx') == 2: s_.text = s_.text.replace(s_.text.split()[6], f"offset:{256*p}")
            if C.get('flx') == 3: s_.text = s_.text.replace(s_.text.split()[6], f"offset:{1024*(p%4)}").replace(" 0 offen", " " + ["0", "s62", "s63", "s76"][p // 4] + " offen")
            s_.ev = {q: ('x', 3, p) for q in vr(xb, 4)}; s_.after = vq[-1]; stores.append(s_)
    unp = {}
    if MA:
        for p in range(13): unpack(p); unp[p] = vq[:]; del vq[:]
        hproc(0)
    else:
        for p in range(12): unpack(p)
        hproc(0); unpack(12)
    for l in range(3):
        for p in range(13): xproc(l, p)
        if l < 2: hproc(l + 1)
        if l == 1:
            e = rd[g1[(2, 12, 5)].g].pg + 1; d = rd[g2[(2, 6, 0, 0)].g].pg - 1
            V(valu(f"v_add_u32 v{VR0}, {U4}, v{UR}", vr(VR0), vr(UR), nb=8, wv='far'), e, d)
            V(valu(f"v_add_u32 v{VR1}, {U4}, v{UR8}", vr(VR1), vr(UR8), nb=8, wv='far'), e, d)
    if C.get('slast'):
        for s_ in stores[-C['slast'][0]:]: s_.text = s_.text.replace(" " + C['saux'], (" " + C['slast'][1]).rstrip())
    for r in rd:
        if getattr(r, 'far', False): r.ev = {r.rd[0]: 'far'}
        elif r.rd[0] in vr(VR0, 2): r.ev = {r.rd[0]: None}
    for i in range(1, len(vq)): vq[i].e = max(vq[i].e, vq[i - 1].e)
    nxt = INF; cnt = 0
    for o in reversed(vq):
        d = min(o.d, nxt)
        if d == nxt:
            cnt += 1
            if cnt > C['vcap'] and d > o.e: d -= 1; cnt = 1
        else: cnt = 1
        o.late = d; nxt = d
        assert o.late >= o.e or o.e >= NG - 1, (o.text, o.e, o.late)
    if st: em.raw(f"s_memtime s[{STAMP0}:{STAMP0+1}]"); em.raw("s_memrealtime s[98:99]")
    enc = C.get('enc')
    em.raw("s_load_dwordx4 s[4:7], s[0:1], 0"); em.raw("s_load_dwordx4 s[8:11], s[0:1], 16")
    em.raw(f"s_getpc_b64 s[64:65]\nL_pc:\ns_mov_b32 s66, L_end-L_pc\ns_mov_b32 s67, 0x20000\ns_bfe_u32 s68, s2, 0x30003\ns_lshl_b32 s68, s68, 7\nv_lshlrev_b32 v19, 10, v0")
    em.emit(Op(f"buffer_load_dword v19, v19, s[64:67], s68 offen", 'vld', rd=['v19'] + srd(64), wr=['v19']))
    sF = 72; sMa, sMb, sD, sI, sSa, sSb = 62, 63, 69, 70, 71, 76; vF = 15
    P(f"""s_lshr_b32 s14, s2, 8
s_cbranch_scc1 L_end
v_lshrrev_b32 v2, 6, v0
v_and_b32 v1, 63, v0
v_readfirstlane_b32 s{sW}, v2
v_lshrrev_b32 v3, 3, v1
v_lshlrev_b32 v{L16}, 4, v1
v_and_b32 v5, 6, v3
v_lshlrev_b32 v5, 4, v5
v_xor_b32 v5, v5, v{L16}
s_movk_i32 s14, 1536
v_mad_u32_u24 v{XD}, v3, s14, v5
v_lshrrev_b32 v4, 5, v1
s_movk_i32 s14, 6656
v_mad_u32_u24 v{VD}, v4, s14, v{XD}
s_and_b32 s{sT0}, s{sW}, 1
s_lshr_b32 s{sT1}, s{sW}, 1
s_lshl_b32 s{sW1k}, s{sW}, 10
s_lshl_b32 s{sWV}, s{sT1}, 12
s_add_u32 s{sWV}, s{sWV}, s{sW1k}
s_mul_i32 s14, s14, s{sT0}
s_mul_i32 s{sL6b}, s{sT1}, 896
s_add_u32 s14, s14, s{sL6b}
v_add_u32 v{VD}, s14, v{VD}
s_lshl2_add_u32 s15, s2, s{sW}
s_mulk_i32 s15, 13312
s_movk_i32 s{sX+2}, 13312
s_mov_b32 s{sX+3}, s67
s_mov_b32 s{sV+2}, 259584
s_mov_b32 s{sV+3}, s67
s_mov_b32 s{sP+2}, {min(C['XB'],259584)}
s_mov_b32 s{sP+3}, s67
s_lshr_b32 s14, s2, 4
s_lshl_b32 s14, s14, 7
s_lshl_b32 s{sT}, s{sT1}, 17
s_add_u32 s14, s14, s{sT}
v_lshlrev_b32 v{PF1}, 11, v1
s_add_u32 s{sMb}, s{sWV}, {U4}
s_movk_i32 s{sD}, 4096
s_movk_i32 s{sI}, 8192
s_movk_i32 s{sSa}, 0
s_movk_i32 s{sSb}, 896
s_movk_i32 s77, {128*C['kA']}
s_bitcmp1_b32 s2, 3
s_cmovk_i32 s77, {128*C['kB']}
s_cmovk_i32 s{sD}, 2048
s_cmovk_i32 s{sI}, 12288
s_cmovk_i32 s{sSb}, 26624
s_cselect_b32 s{sMa}, s{sMb}, s{sW1k}
s_cselect_b64 s[{sF+2}:{sF+3}], s[{sV+2}:{sV+3}], s[{sX+2}:{sX+3}]
s_cselect_b64 vcc, -1, 0
v_cndmask_b32 v{vF}, v{XD}, v{VD}, vcc
s_cmp_eq_u32 s{sT0}, 1""")
    em.raw("s_waitcnt lgkmcnt(0)")
    if st: em.raw(f"s_memtime s[{STAMP0+2}:{STAMP0+3}]")
    P(f"""s_cselect_b64 s[{sP}:{sP+1}], s[6:7], s[8:9]
s_add_u32 s{sX}, s4, s15
s_addc_u32 s{sX+1}, s5, 0
s_mov_b64 s[{sV}:{sV+1}], s[8:9]
s_mov_b64 s[{sF}:{sF+1}], s[{sX}:{sX+1}]
s_cbranch_vccz L_loop
s_mov_b64 s[{sF}:{sF+1}], s[8:9]""")
    em.emit(Op(f"buffer_load_dword v18, v{PF1}, s[{sP}:{sP+3}], s14 offen", 'vld', rd=vr(PF1) + srd(sP), wr=['v18']))
    xa = (" " + C['xaux']) if C['xaux'] else ""
    em.raw(f"""L_loop:
s_mov_b32 m0, s{sMa}
s_add_u32 s{sMb}, s{sMa}, s{sD}
buffer_load_dwordx4 v{vF}, s[{sF}:{sF+3}], s{sSa} offen{xa} lds
s_mov_b32 m0, s{sMb}
s_add_u32 s{sMa}, s{sMa}, s{sI}
buffer_load_dwordx4 v{vF}, s[{sF}:{sF+3}], s{sSb} offen{xa} lds
s_addk_i32 s{sSb}, 128
s_addk_i32 s{sSa}, 128
s_cmp_lg_u32 s{sSa}, s77
s_cbranch_scc1 L_loop""")
    if C['touch'] == 1: em.raw('; T1', cost=0, nb=0, ws=0)
    todo = list(pieces)
    pf2op = Op(f"buffer_load_dword v17, v{PF1}, s[{sP}:{sP+3}], s14 offen", 'vld', rd=vr(PF1) + srd(sP), wr=['v17'])
    nis = [0]
    def issue_now(q, silent=False):
        n0 = len(em.out)
        for o in q.pre + q.ops: em.emit(o)
        if silent: del em.out[n0:]
        nis[0] += len(q.ops)
        if C['pf2'] == list(q.name) and not MA: em.emit(pf2op)
        if st and not silent and ['P', nis[0]] in C['stamps']:
            i = C['stamps'].index(['P', nis[0]]); em.raw(f"s_memtime s[{STAMP0+6+2*i}:{STAMP0+7+2*i}]")
        q.issued = em.gap; todo.remove(q)
        if C['touch'] and nis[0] - len(q.ops) < C['tA' if MA else 'tB'] <= nis[0]: em.raw('; TA' if MA else '; TB', cost=0, nb=0, ws=0)
    for a in range(C['kA'] if MA else C['kB']):
        for q in ([xp[a], xp[7 + a]] if MA else [vp[(0, a, 0)], vp[(0, a, 1)]]): issue_now(q, True)
    P(f"""s_lshl_b32 s{sWp}, s{sT0}, 10
s_mul_i32 s{sL6a}, s{sT1}, {26624-896}
s_add_u32 s{sL6a}, s{sL6a}, 768
s_sub_u32 s{sL6b}, {53248+768}, s{sL6b}
s_mul_i32 s{sW1664}, s{sW}, 1664
s_add_u32 s{sT}, s{sW1664}, 79872
s_mov_b32 s{sVS[0]}, 0
s_mov_b32 s{sVS[1]}, 26624
s_mov_b32 s{sVS[2]}, 53248""")
    em.raw("s_load_dwordx2 s[12:13], s[0:1], 32")
    P(f"""s_add_u32 s14, s14, {C['XB']}
s_mov_b32 s{sP+2}, {259584-16384*C['SV']}
s_cmp_eq_u32 s{sT0}, 1
s_cselect_b32 s{sP+2}, {259584-16384*C['SU']}, s{sP+2}""")
    if C['pf3'] is not None:
        P(f"""s_mov_b32 s{sP+2}, 169472
s_mov_b32 s{sF}, s{sP}
s_or_b32 s{sF+1}, s{sP+1}, 0x1000000
s_movk_i32 s{sF+2}, 176
s_mov_b32 s{sF+3}, s67
s_lshr_b32 s{sD}, s2, 3
s_lshl_b32 s{sD}, s{sD}, 7
s_mul_i32 s{sI}, s{sT1}, 45056
s_add_u32 s{sD}, s{sD}, s{sI}
s_add_u32 s{sD}, s{sD}, 169472""")
        if C.get('pf3B'): P(f"""s_or_b32 s{sF+1}, s{sP+1}, 0x800000
s_lshr_b32 s{sD}, s2, 4
s_lshl_b32 s{sD}, s{sD}, 7
s_add_u32 s{sD}, s{sD}, s{sI}
s_add_u32 s{sD}, s{sD}, 169472
s_bitcmp1_b32 s2, 3
s_cselect_b32 s{sF+2}, 352, 0""")
        q = Piece(('pf3',), [], [m0(sW1k, BIASB + 4096)], Op(f"buffer_load_dword v{L16}, s[{sF}:{sF+3}], s{sD} idxen lds", 'dma', rd=[f"v{L16}", 'm0', f"s{sD}"] + srd(sF)), True)
        q.est = C['pf3']; todo.insert(0, q)
    if st: em.raw("s_load_dwordx2 s[60:61], s[0:1], 48")
    P(f"""s_mov_b32 s{sU}, s6
s_mov_b32 s{sU+1}, s7
s_mov_b32 s{sU+2}, 53248
s_mov_b32 s{sU+3}, 0x20000
s_add_u32 s{sU4}, s6, {212992-U4}
s_addc_u32 s{sU4+1}, s7, 0
s_mov_b32 s{sU4+2}, {259584-212992+U4}
s_mov_b32 s{sU4+3}, 0x20000
s_mov_b32 s{sB}, s10
s_mov_b32 s{sB+1}, s11
s_mov_b32 s{sB+2}, 2496
s_mov_b32 s{sB+3}, 0x20000
s_mov_b32 s{sO+2}, 13312
s_mov_b32 s{sO+3}, 0x20000
s_mov_b32 s{sMask}, 0xffff0000
s_mov_b32 s{sLo}, -1
s_mov_b32 s{sLo+1}, 0
v_and_b32 v2, 15, v1
v_lshrrev_b32 v3, 4, v1
v_lshlrev_b32 v6, 4, v3
v_mul_u32_u24 v7, 416, v2
v_add_u32 v{UR}, v7, v6
v_and_b32 v13, 1, v3
v_lshl_add_u32 v7, v13, 3, v7
v_add_u32 v{UR8}, 192, v7
v_mul_u32_u24 v7, 832, v2
v_add_u32 v{SO}, v7, v6
v_xor_b32 v13, 32, v6
v_cmp_gt_u32 vcc, 8, v2
v_cndmask_b32 v13, v13, v{SO}, vcc
v_add_u32 v{T6R}, {V12B}, v13
v_mul_u32_u24 v7, 832, v3
v_lshl_add_u32 v7, v2, 2, v7
v_add_u32 v{PA}, {BIASB}, v7
v_lshrrev_b32 v4, 3, v2
v_and_b32 v5, 3, v2
v_lshl_add_u32 v7, v4, 2, v5
v_lshlrev_b32 v7, 7, v7
v_and_b32 v13, 4, v2
v_lshl_add_u32 v7, v13, 8, v7
v_and_b32 v13, 2, v2
v_lshlrev_b32 v13, 4, v13
v_lshl_or_b32 v13, v4, 6, v13
v_xor_b32 v13, v13, v6
v_add_u32 v13, {VB}, v13
v_add_u32 v{VR0}, v7, v13
v_xor_b32 v{VR1}, 64, v{VR0}
v_subrev_u32 v{VRB}, {VB-U4}, v{VR0}
v_subrev_u32 v{VRB+1}, {VB-U4}, v{VR1}
v_lshrrev_b32 v7, 1, v2
v_lshl_add_u32 v7, v7, 7, s{sW1k}
v_and_b32 v5, 1, v2
v_and_b32 v13, 12, v2
v_lshlrev_b32 v13, 3, v13
v_xor_b32 v13, v13, v6
v_lshlrev_b32 v14, 6, v5
v_xor_b32 v13, v13, v14
v_add_u32 v7, v7, v13
v_mul_u32_u24 v14, 49152, v5
v_add_u32 v{XA0}, v7, v14
v_lshlrev_b32 v14, 12, v5
v_sub_u32 v{XAE}, v7, v14
v_add_u32 v{XAE}, 4096, v{XAE}
v_xor_b32 v7, 64, v7
v_add_u32 v{XAO}, v7, v14
v_mov_b32 v7, 0x3f80""")
    if C['fl']: P(f"v_mul_u32_u24 v14, 768, v5\nv_sub_u32 v{SO}, v{SO}, v14\ns_mov_b32 s62, 0x55555555\ns_mov_b32 s63, s62")
    if C.get('flx') == 2: P(f"v_lshrrev_b32 v14, 4, v1\nv_mul_u32_u24 v14, 3072, v14\nv_add_u32 v{SO}, v14, v{L16}")
    elif C.get('flx') == 3: P(f"v_mov_b32 v{SO}, v{L16}\ns_movk_i32 s62, 4096\ns_movk_i32 s63, 8192\ns_movk_i32 s76, 12288")
    elif C.get('flx'): P(f"v_lshrrev_b32 v14, 3, v1\nv_mul_u32_u24 v14, 1536, v14\nv_add_u32 v{SO}, v14, v{L16}")
    for l in range(3):
        P(f"""v_cmp_eq_u32 vcc, {l}, v3
v_cndmask_b32 v13, 0, v7, vcc
v_accvgpr_write_b32 a{BG(l)+1}, 0
v_accvgpr_write_b32 a{BG(l)+4}, v13
v_lshlrev_b32 v13, 16, v13
v_accvgpr_write_b32 a{BG(l)+5}, 0
v_accvgpr_write_b32 a{BG(l)}, v13""")
    em.raw("s_waitcnt lgkmcnt(0)")
    P(f"s_add_u32 s{sO}, s12, s15\ns_addc_u32 s{sO+1}, s13, 0")
    if C['touch'] == 2: em.raw('; T1', cost=0, nb=0, ws=0)
    em.raw('; SPLIT', cost=0, nb=0, ws=0)
    if enc == 'split': em.raw("s_memrealtime s[96:97]\ns_waitcnt lgkmcnt(0)")
    def smem():
        if not (C['SU'] or C['SV']): return
        P(f"""s_lshr_b32 s{sD}, s2, 3
s_lshl2_add_u32 s{sD}, s{sD}, s{sW}
s_lshl_b32 s{sD}, s{sD}, 7
s_add_u32 s{sF}, s6, s{sD}
s_addc_u32 s{sF+1}, s7, 0
s_add_u32 s{sF+2}, s8, s{sD}
s_addc_u32 s{sF+3}, s9, 0""")
        for i in range(C['SV']): em.raw(f"s_load_dword s{sD}, s[{sF+2}:{sF+3}], {259584 - 16384*(C['SV']-i)}", nb=8)
        for i in range(C['SU']): em.raw(f"s_load_dword s{sD}, s[{sF}:{sF+1}], {259584 - 16384*(C['SU']-i)}", nb=8)
    def xread(r):
        for q in r.pieces: r.needs.append(q.ops[-1])
        em.emit(r)
    if MA:
        for a in range(C['kA'], 6): issue_now(xp[a]); issue_now(xp[7 + a])
        issue_now(xp[6])
        if C['XB'] < 259584 and C['pf2'] is None: em.emit(Op(f"buffer_load_dword v17, v{PF1}, s[{sP}:{sP+3}], s14 offen", 'vld', rd=vr(PF1) + srd(sP), wr=['v17']))
        issue_now(bp)
        smem()
        while nis[0] < C['pfat']: issue_now([q for q in todo if q.est < 0][0])
        em.raw("s_waitcnt lgkmcnt(0)")
        prev = None
        for p in list(range(1, 12)) + [0, 12, None]:
            if p is not None:
                for r in xr2[p]: xread(r)
            if nis[0] < C['npro']: issue_now([q for q in todo if q.est < 0][0])
            if prev is not None:
                for o in unp[prev]: em.emit(o)
            prev = p
    else:
        smem()
        for c in C['xearly']: issue_now(xp[c])
        for q in [q for q in todo if not q.private and q.name[0] != 'u' and (q is bp or q.name[1] == 0)]: issue_now(q)
    while nis[0] < C['npro']:
        q = [q for q in todo if q.est < 0][0]; assert not q.war; issue_now(q)
    if not MA: em.raw("s_waitcnt lgkmcnt(0)")
    if C['touch']: em.raw('s_mov_b64 vcc, 0')
    em.raw('; MAIN', cost=0, nb=0, ws=0)
    freed = 0; slack = []
    def barop(g):
        nd = bar_needs(g)
        for q in nd: assert q.issued is not None, f"piece {q.name} not issued at barrier {g} (need {q.need})"
        return Op("s_barrier", 'bar', needs=[q.ops[-1] for q in nd], cost=2), nd
    def elig(q, g):
        if q.est > g: return False
        for o in q.war:
            for r in o.readers:
                if r.seq is None or r.seq >= (em.lg_done if o.private else freed): return False
        return True
    stamps = {}
    if st:
        for i, key in enumerate(C['stamps']):
            if key[0] != 'P': stamps[start[tuple(key)]] = f"s_memtime s[{STAMP0+6+2*i}:{STAMP0+7+2*i}]"
    if isinstance(enc, list): stamps[start[tuple(enc)]] = "s_memrealtime s[96:97]"
    cur = None; curq = []; lastd = -INF; vi = 0; fill = []; T = 0; tl = {}
    for g in range(-1, NG):
        em.gap = g; o0 = len(em.out); shadow = g >= 0
        if g >= 0:
            if g in stamps: em.raw(stamps[g], nb=8)
            em.emit(mf[g])
        om = len(em.out)
        if g in bars or g == -1:
            b, nd = barop(g)
            em.emit(b); freed = em.lg_done; shadow = False
            slack += [(g - q.issued, q.name) for q in nd if q.issued >= 0]
            if g == -1 and enc == 'bar0': em.raw("s_memrealtime s[96:97]")
            if g == -1 and st: em.raw(f"s_memtime s[{STAMP0+4}:{STAMP0+5}]")
        must = (bar_needs(g + 1) if g + 1 in bars else []) + [q for r in rgap[g + 1] for q in r.pieces if q.private]
        while g < G20 and any(q.issued is None for q in must):
            if cur is None: cur = [q for q in todo if elig(q, g)][0]; curq = list(cur.pre) + list(cur.ops); todo.remove(cur)
            for o in curq: em.emit(o)
            if C['pf2'] == list(cur.name) and not MA: em.emit(pf2op)
            cur.issued = g; cur = None; curq = []; lastd = g; shadow = False
        lg, vm = em.need(mf[g + 1]) if 0 <= g < NG - 1 else (0, 0)
        if g + 1 in bars:
            vm = em.need(barop(g + 1)[0])[1]
            if g + 2 < NG: lg = max(lg, em.need(mf[g + 2])[0])
            lg = max(lg, em.lg_done + 1) if em.lg_done < len(em.lg) and em.lg[em.lg_done].gap <= g - em.lg_slack else lg
        if lg or vm: em.wait(lg, vm); shadow = False
        sp = C['sp0'] if g < G20 else (C.get('sp1', C['sp0']) if g < G20 + C['spend'] else C['sp'])
        if cur is None:
            el = [q for q in todo if elig(q, g)]
            if el: cur = el[0]; curq = list(cur.pre) + list(cur.ops); todo.remove(cur)
        if cur and curq[0].kind == 'salu' and (shadow or g < G20): em.emit(curq.pop(0))
        for r in rgap[g + 1]:
            if g == -1 and r.pieces[0].private and C['post']:
                for o in curq: em.emit(o)
                if cur: cur.issued = g; cur = None; curq = []
                for _ in range(C['post'] - 1): issue_now([q for q in todo if q.est < 0][0])
                C['post'] = 0
            for q in r.pieces:
                if q.private: r.needs.append(q.ops[-1])
            em.emit(r)
        nf = len(rgap[g + 1]) + (2 if g in bars else 0)
        if cur and curq[0].kind == 'dma' and g - lastd >= sp and (g >= C.get('qend', G20) or len(em.vm) - em.vm_done + (C['pfw'] if pf2op.seq is not None and pf2op.seq >= em.vm_done else 0) < C['Q']):
            em.emit(curq.pop(0)); lastd = g; nf += 2
            if not curq:
                if C['pf2'] == list(cur.name) and not MA: em.emit(pf2op)
                cur.issued = g; cur = None
        elif stores and stores[0].after.gap is not None:
            em.emit(stores.pop(0)); nf += 4
        while vi < len(vq) and (g == NG - 1 or (vq[vi].e <= g and (nf < 2 or vq[vi].late <= g or (C.get('vs') and g == C['vs'][0] and len(vq) - vi > C['vs'][1]) or (g < G20 and nf < C['ufill'])))):
            em.emit(vq[vi]); vi += 1; nf += 1
            if g == NG - 1 and stores and stores[0].after.gap is not None: em.emit(stores.pop(0))
        c = sum(x[2] for x in em.out[o0:]) - (1 if g >= 0 and len(em.out) > om and em.out[om][0].startswith('s_') and not em.out[om][0].startswith('s_barrier') else 0)
        REMV[(C['mode'], g)] = len(vq) - vi
        fill.append(c); tl[g] = T; T += max(4, c)
    assert not todo and cur is None and not stores and vi == len(vq)
    if st:
        ns = 3 + len(C['stamps'])
        em.raw(f"s_memtime s[{STAMP0+2*ns}:{STAMP0+2*ns+1}]"); ns += 1
        em.raw("s_waitcnt vmcnt(0)")
        em.raw(f"s_memtime s[{STAMP0+2*ns}:{STAMP0+2*ns+1}]"); ns += 1
        assert STAMP0 + 2 * ns <= 98
        em.raw("s_memrealtime s[100:101]")
        em.raw("s_waitcnt lgkmcnt(0)")
        em.raw(f"s_mov_b32 s16, s60\ns_mov_b32 s17, s61\ns_mov_b32 s18, 65536\ns_mov_b32 s19, 0x20000")
        em.raw(f"s_lshl_b32 s20, s2, 2\ns_add_u32 s20, s20, s{sW}\ns_lshl_b32 s20, s20, 6\nv_mov_b32 v1, s20\ns_mov_b64 exec, 1")
        for i in range(12): em.raw(f"v_mov_b32 v0, s{STAMP0+2*i}\ns_nop 1\nbuffer_store_dword v0, v1, s[16:19], 0 offen offset:{4*i}\ns_nop 1")
    if enc:
        if enc == 'end': em.raw("s_memrealtime s[96:97]")
        em.raw("s_waitcnt vmcnt(0)")
        if enc == 'drain': em.raw("s_memrealtime s[96:97]")
        em.raw("s_waitcnt lgkmcnt(0)\nL_sp:\ns_memrealtime s[100:101]\ns_waitcnt lgkmcnt(0)\ns_sub_u32 s100, s100, s96\ns_cmp_lt_u32 s100, 2000\ns_cbranch_scc1 L_sp")
    if C['verbose']:
        print("slots", T, "waits", em.nwait, "nops", em.nnop, "bytes", sum(x[3] for x in em.out), "bars", barl)
        print("phase slots", {k: tl[v] for k, v in start.items() if k[2] == 0 and k[0] == 'G2'})
        print("fill", "".join(str(min(c, 9)) for c in fill))
        print("slack", [(s_, n) for s_, n in slack])
    return [(t, gap) for (t, gap, c, nb) in em.out]

def pads(L):
    import subprocess, re
    L = "\n".join(L).split("\n")
    o = []
    for t in L:
        if t == '; T1':
            o += ["s_mov_b64 vcc, -1", "s_bfe_u32 s77, s2, 0x10003", f"s_lshl2_add_u32 s77, s77, s{sW}"]
            for w in range(8): o += [f"s_cmp_eq_u32 s77, {w}", f"s_cbranch_scc1 @{w}"]
            o.append("L_rT:")
        elif t not in ('; TA', '; TB'):
            o.append(t)
            if t in ('L_B:', 'L_M:'): o.append("s_cbranch_vccnz L_rT")
    open('pad.s', 'w').write(re.sub(r"@\d", "L_end", "\n".join(o)) + "\n")
    subprocess.run("clang -target amdgcn-amd-amdhsa -mcpu=gfx950 -c pad.s -o pad.o", shell=True, check=True)
    ad = [int(m.group(1), 16) for m in re.finditer(r"// ([0-9A-F]{12}):", subprocess.run("llvm-objdump -d pad.o", shell=True, capture_output=True, text=True).stdout)]
    isins = lambda t: not (t.startswith(';') or t.startswith('.') or t.endswith(':') or not t)
    idx = [i for i, t in enumerate(o) if isins(t)]
    assert len(idx) == len(ad), (len(idx), len(ad))
    iB, iM = o.index('L_B:'), o.index('L_M:')
    nB = idx.index(iB + 1)
    tA = ['L_M']; tB = ['L_B']; ins = {}; sh = 0x300; pg = 4096
    while pg < ad[-1] + sh:
        if pg - 4096 < ad[nB] + sh <= pg:
            k = (pg - ad[nB] - sh) // 4; ins[iB] = ["s_endpgm"] * k; sh += 4 * k; pg += 4096; continue
        c = [n for n in range(len(ad)) if pg <= ad[n] + sh < pg + 60]
        g = [n for n in c if o[idx[n - 1]].startswith('v_mfma') and not o[idx[n]].startswith('s_')]
        n = (g or c)[0]; i = idx[n]; nm = f"L_pad{pg//4096}"
        if "s_mov_b64 vcc, s[62:63]" in o[:i]: print("Error: page crossing in last phase"); break
        if i < iB or i > iM: tA.append(nm)
        if i > iB: tB.append(nm)
        ins[i] = [nm + ":", "s_cbranch_vccnz L_rT"]; sh += 4
        pg += 4096
    print("merge pads", tA, tB, hex(ad[-1] + sh))
    tg = (tA[::-1] + ['L_rT'] * 4)[:4] + (tB[::-1] + ['L_rT'] * 4)[:4]
    o2 = []
    for i, t in enumerate(o):
        o2 += ins.get(i, [])
        o2.append(re.sub(r"@(\d)", lambda m: tg[int(m.group(1))], t))
    return o2

def compose(kw):
    ab = kw.pop('B', None)
    if kw.get('ms'):
        gen(**{**kw, 'verbose': False}); gen(**{**kw, **ab, 'mode': 'B', 'verbose': False}); kw['vs'] = [kw['ms'], min(REMV[('A', kw['ms'])], REMV[('B', kw['ms'])])]
    A = gen(**kw)
    L = ["; DCN-v2 cross network, generated by gen/v2.py", "; @launch grid=(256,1,1) block=(256,1,1) lds=163840",
         '.amdgcn_target "amdgcn-amd-amdhsa--gfx950"', ".text", f".globl {NAME}_kernel"] + ([".p2align 12"] if kw.get('al', 1) else []) + [".p2align 8", f".type {NAME}_kernel,@function", f"{NAME}_kernel:"]
    if ab is None: L += [t for t, g in A]
    else:
        Bv = gen(**{**kw, **ab, 'mode': 'B'})
        sp = [t for t, g in A].index('; SPLIT')
        assert A[:sp] == Bv[:sp]
        k = 0
        while A[-1 - k] == Bv[-1 - k]: k += 1
        while not A[-k][0].startswith('v_mfma'): k -= 1
        k -= 1
        print("merge at gap", A[-k][1])
        mb = [t for t, g in Bv].index('; MAIN')
        L += [t for t, g in A[:sp]] + ["s_bitcmp1_b32 s2, 3", "s_cbranch_scc0 L_A"] + [t for t, g in Bv[sp:mb]] + ["s_branch L_B", "L_A:"]
        L += [t for t, g in A[sp:-k]] + ["s_branch L_M", "L_B:"]
        L += [t for t, g in Bv[mb:-k]] + ["L_M:"] + [t for t, g in A[-k:]]
    L.append("L_end:\ns_endpgm")
    if kw.get('touch'): L = pads(L)
    L.append(f'.section .rodata,"a"\n.p2align 6\n.amdhsa_kernel {NAME}_kernel\n  .amdhsa_next_free_vgpr 512\n  .amdhsa_next_free_sgpr 102\n  .amdhsa_accum_offset 256\n  .amdhsa_group_segment_fixed_size 0\n  .amdhsa_kernarg_size 56\n  .amdhsa_user_sgpr_count 2\n  .amdhsa_user_sgpr_kernarg_segment_ptr 1\n  .amdhsa_system_sgpr_workgroup_id_x 1\n.end_amdhsa_kernel')
    return "\n".join(L) + "\n"

if __name__ == "__main__":
    kw = json.loads(sys.argv[2]) if len(sys.argv) > 2 else {}
    kw['verbose'] = True
    open(sys.argv[1], "w").write(compose(kw))
```
